```python
import torch

def _softmax(x, axis=-1):
    return torch.softmax(x, dim=axis)
def _gelu(x):
    return torch.nn.functional.gelu(x, approximate="tanh")
def _silu(x):
    return torch.nn.functional.silu(x)
def _sigmoid(x):
    return torch.sigmoid(x)
def _layernorm(x, axis=-1, eps=1e-5):
    m = x.mean(dim=axis, keepdim=True)
    v = x.var(dim=axis, keepdim=True, unbiased=False)
    return (x - m) / torch.sqrt(v + eps)
def _scatter_add(tgt, idx, src, axis=0):
    return tgt.clone().index_add_(axis, idx, src)
def _segment_sum(src, seg, n):
    out = torch.zeros((n,) + src.shape[1:], dtype=src.dtype)
    return out.index_add_(0, seg, src)
def _pad(x, pw):
    flat = tuple(v for pair in reversed(pw) for v in pair)
    return torch.nn.functional.pad(x, flat)

kernel_name = 'standalone__ssm_conv_s5__prompt'

def setup_inputs():

    _w = (lambda a: (lambda t: t.to(torch.bfloat16) if t.is_floating_point() else t)(torch.as_tensor(a)))
    B, S, D = 1, 2048, 1024
    P = D
    Lambda_re = -0.5 * (lambda _x: torch.exp(torch.as_tensor(_x)))((lambda *s: torch.randn(*s, dtype=torch.bfloat16) * 0.2)(P))
    Lambda_im = (lambda *s: torch.randn(*s, dtype=torch.bfloat16) * 0.4)(P) * 1.0
    B_re = (lambda *s: torch.randn(*s, dtype=torch.bfloat16) * 0.2)(P, D) * (D ** -0.5)
    B_im = (lambda *s: torch.randn(*s, dtype=torch.bfloat16) * 0.2)(P, D) * (D ** -0.5)
    C_re = (lambda *s: torch.randn(*s, dtype=torch.bfloat16) * 0.2)(D, P) * (P ** -0.5)
    C_im = (lambda *s: torch.randn(*s, dtype=torch.bfloat16) * 0.2)(D, P) * (P ** -0.5)
    log_dt = (lambda *s: torch.randn(*s, dtype=torch.bfloat16) * 0.2)(P) * 0.3 - 2.0
    Dskip = (lambda *s: torch.randn(*s, dtype=torch.bfloat16) * 0.05)(D)
    return {
        "x": _w((lambda *s: torch.randn(*s, dtype=torch.bfloat16) * 0.05)(B, S, D)),
        "Lambda_re": _w(Lambda_re),
        "Lambda_im": _w(Lambda_im),
        "B_re": _w(B_re),
        "B_im": _w(B_im),
        "C_re": _w(C_re),
        "C_im": _w(C_im),
        "log_dt": _w(log_dt),
        "Dskip": _w(Dskip),
    }

def reference(x, Lambda_re, Lambda_im, B_re, B_im, C_re, C_im, log_dt, Dskip):
    Bsz, L, H = x.shape
    Lam = Lambda_re + 1j * Lambda_im
    Bmat = B_re + 1j * B_im
    Cmat = C_re + 1j * C_im
    dt = torch.exp(log_dt)
    Lam_bar = torch.exp(dt * Lam)
    B_bar = ((Lam_bar - 1.0) / Lam)[:, None] * Bmat
    Bu = torch.einsum("bld,pd->blp", x + 0j, B_bar)
    h = torch.zeros_like(Bu[:, 0, :])
    hs = []
    for t in range(L):
        h = Lam_bar[None, :] * h + Bu[:, t, :]
        hs.append(h)
    hseq = torch.stack(hs, 1)
    y = 2.0 * torch.einsum("blp,dp->bld", hseq, Cmat).real + x * Dskip[None, None, :]
    return y
```

```python
import sys

L = []
def e(s=""):
    L.append("    " + s if s and not s.endswith(":") and not s.startswith(".") and not s.startswith(";") else s)

def vr(b, n=1):
    return f"v{b}" if n == 1 else f"v[{b}:{b+n-1}]"
def sr(b, n=1):
    return f"s{b}" if n == 1 else f"s[{b}:{b+n-1}]"

LOG2E = 0x3fb8aa3b
INV2PI = 0x3e22f983

HDR = """; Kernarg layout (96 bytes): x, Lambda_re, Lambda_im, B_re, B_im, C_re, C_im, log_dt, Dskip, out, debug, ws
; @launch kernel=s5_k1_kernel grid=(256,1,1) block=(512,1,1) lds=163840
; @launch kernel=s5_k2_kernel grid=(256,1,1) block=(512,1,1) lds=147456
.amdgcn_target "amdgcn-amd-amdhsa--gfx950"
.text
"""

def srd(d, base, size):
    e(f"s_mov_b32 s{d}, s{base}")
    e(f"s_and_b32 s{d+1}, s{base+1}, 0xffff")
    e(f"s_mov_b32 s{d+2}, {size}")
    e(f"s_mov_b32 s{d+3}, 0x00020000")

def lam_params(vch, out, tmp, sLre, sLim, sLdt, want):
    e(f"v_lshlrev_b32 v{tmp+3}, 1, v{vch}")
    e(f"global_load_ushort v{tmp}, v{tmp+3}, s[{sLre}:{sLre+1}]")
    e(f"global_load_ushort v{tmp+1}, v{tmp+3}, s[{sLim}:{sLim+1}]")
    e(f"global_load_ushort v{tmp+2}, v{tmp+3}, s[{sLdt}:{sLdt+1}]")
    def compute():
        lre, lim, ldt = tmp, tmp + 1, tmp + 2
        a, b, c, d, f, g = tmp + 3, tmp + 4, tmp + 5, tmp + 6, tmp + 7, tmp + 8
        e(f"v_lshlrev_b32 v{lre}, 16, v{lre}")
        e(f"v_lshlrev_b32 v{lim}, 16, v{lim}")
        e(f"v_lshlrev_b32 v{ldt}, 16, v{ldt}")
        e(f"v_mul_f32 v{a}, {LOG2E:#x}, v{ldt}")
        e(f"v_exp_f32 v{a}, v{a}")
        e("s_nop 0")
        e(f"v_cvt_pk_bf16_f32 v{a}, v{a}, v{a}")
        e(f"v_lshlrev_b32 v{a}, 16, v{a}")
        e(f"v_mul_f32 v{b}, v{a}, v{lre}")
        e(f"v_mul_f32 v{c}, v{a}, v{lim}")
        e(f"v_mul_f32 v{b}, {LOG2E:#x}, v{b}")
        e(f"v_mul_f32 v{c}, {INV2PI:#x}, v{c}")
        for nm, n in (("l1", 1.0), ("l16", 16.0), ("l128", 128.0)):
            if nm + "r" not in want and not (nm == "l1" and "s2r" in want):
                continue
            rr = out.get(nm + "r", tmp + 9); ii = out.get(nm + "i", tmp + 10)
            import struct
            nb = struct.unpack("<I", struct.pack("<f", n))[0]
            e(f"v_mul_f32 v{d}, {nb:#x}, v{b}")
            e(f"v_mul_f32 v{f}, {nb:#x}, v{c}")
            e(f"v_exp_f32 v{d}, v{d}")
            e(f"v_fract_f32 v{f}, v{f}")
            e(f"v_cos_f32 v{g}, v{f}")
            e(f"v_sin_f32 v{f}, v{f}")
            e("s_nop 0")
            e(f"v_mul_f32 v{rr}, v{d}, v{g}")
            e(f"v_mul_f32 v{ii}, v{d}, v{f}")
            if nm == "l1" and "s2r" in want:
                e(f"v_add_f32 v{d}, -1.0, v{rr}")
                e(f"v_mul_f32 v{f}, v{lre}, v{lre}")
                e(f"v_fma_f32 v{f}, v{lim}, v{lim}, v{f}")
                e(f"v_rcp_f32 v{f}, v{f}")
                e(f"v_mul_f32 v{g}, v{d}, v{lre}")
                e(f"v_fma_f32 v{g}, v{ii}, v{lim}, v{g}")
                e(f"v_mul_f32 v{a}, v{ii}, v{lre}")
                e(f"v_fma_f32 v{a}, -v{d}, v{lim}, v{a}")
                e(f"v_add_f32 v{f}, v{f}, v{f}")
                e(f"v_mul_f32 v{out['s2r']}, v{g}, v{f}")
                e(f"v_mul_f32 v{out['s2i']}, v{a}, v{f}")
    return compute

def cmad(hr, hi, lr, li, br, bi, t0, t1):
    e(f"v_fma_f32 v{t0}, v{lr}, v{hr}, v{br}")
    e(f"v_fma_f32 v{t1}, v{lr}, v{hi}, v{bi}")
    e(f"v_fma_f32 v{t0}, -v{li}, v{hi}, v{t0}")
    e(f"v_fma_f32 v{hi}, v{li}, v{hr}, v{t1}")
    e(f"v_mov_b32 v{hr}, v{t0}")

def gen_k1():
    NS = 5; SLOT = 32768; NST = 16
    e(".globl s5_k1_kernel")
    e(".p2align 8")
    e(".type s5_k1_kernel,@function")
    e("s5_k1_kernel:")
    e("s_cmp_ge_u32 s2, 256")
    e("s_cbranch_scc1 K1_done")
    e("s_load_dwordx4 s[4:7], s[0:1], 0")
    e("s_load_dwordx4 s[8:11], s[0:1], 16")
    e("s_load_dwordx2 s[12:13], s[0:1], 32")
    e("s_load_dwordx2 s[14:15], s[0:1], 56")
    e("s_load_dwordx4 s[16:19], s[0:1], 80")
    sC, sG, sW, sKh, sWm, sWn, sT2, sK, sM0A, sM0B, sTmp = 40, 41, 42, 43, 44, 45, 46, 47, 48, 49, 50
    SX, SB, SH, SD = 20, 24, 28, 32
    e("s_and_b32 s3, s2, 7")
    e("s_lshr_b32 s51, s2, 3")
    e("s_lshr_b32 s52, s3, 1")
    e("s_lshl_b32 s52, s52, 2")
    e("s_lshr_b32 s53, s51, 3")
    e(f"s_add_u32 s{sC}, s52, s53")
    e("s_and_b32 s52, s3, 1")
    e("s_lshl_b32 s52, s52, 3")
    e("s_and_b32 s53, s51, 7")
    e(f"s_add_u32 s{sG}, s52, s53")
    vLane = 1; vL31 = 2; vHh = 3
    vDA = 4
    vDB = 6
    vRA = 8
    vRB = 14
    vP = 20
    vQ = 26
    vT = 30
    vT2 = 48
    vFA = 64
    vFB = 80
    vAcc = 96
    vR = 160
    vE = 192
    e(f"v_and_b32 v{vLane}, 63, v0")
    e(f"v_lshrrev_b32 v{vT}, 6, v0")
    e("s_nop 0")
    e(f"v_readfirstlane_b32 s{sW}, v{vT}")
    e(f"v_and_b32 v{vL31}, 31, v0")
    e(f"v_lshrrev_b32 v{vHh}, 5, v{vLane}")
    e("s_nop 1")
    e(f"s_lshr_b32 s{sKh}, s{sW}, 2")
    e(f"s_lshr_b32 s{sWm}, s{sW}, 1")
    e(f"s_and_b32 s{sWm}, s{sWm}, 1")
    e(f"s_and_b32 s{sWn}, s{sW}, 1")
    e(f"s_lshl_b32 s{sT2}, s{sWm}, 1")
    e(f"s_add_u32 s{sT2}, s{sT2}, s{sKh}")
    e(f"s_lshl_b32 s{sT2}, s{sT2}, 1")
    e("s_waitcnt lgkmcnt(0)")
    srd(SX, 4, 2048 * 1024 * 2)
    e(f"s_cmp_eq_u32 s{sWm}, 0")
    e("s_cselect_b32 s52, s10, s12")
    e("s_cselect_b32 s53, s11, s13")
    srd(SB, 52, 1024 * 1024 * 2)
    srd(SH, 18, 8 * 1024 * 1024 + 131072)
    srd(SD, 16, 256)
    e(f"s_lshl_b32 s52, s{sG}, 6")
    e(f"s_lshl_b32 s53, s{sWn}, 5")
    e("s_add_u32 s53, s53, s52")
    e(f"v_add_u32 v{vT+12}, s53, v{vL31}")
    e(f"v_add_u32 v{vT2+12}, s52, v{vLane}")
    cp1 = lam_params(vT + 12, dict(l1r=vP, l1i=vP+1, l16r=vP+2, l16i=vP+3, s2r=vP+4, s2i=vP+5), vT, 6, 8, 14,
                     {"l1r", "l16r", "s2r"})
    cp2 = lam_params(vT2 + 12, dict(l16r=vQ, l16i=vQ+1, l128r=vQ+2, l128i=vQ+3), vT2, 6, 8, 14, {"l16r", "l128r"})
    t0, t1, t2 = vE, vE + 1, vE + 2
    e(f"v_lshrrev_b32 v{t0}, 3, v{vLane}")
    e(f"v_and_b32 v{t0}, 3, v{t0}")
    e(f"v_lshl_add_u32 v{t0}, v{vHh}, 4, v{t0}")
    e(f"v_lshrrev_b32 v{t1}, 4, v{vLane}")
    e(f"v_and_b32 v{t2}, 7, v{vLane}")
    e(f"v_xor_b32 v{t1}, v{t1}, v{t2}")
    for i in range(2):
        e(f"s_lshl_b32 s52, s{sW}, 1")
        e(f"s_add_u32 s52, s52, {i}")
        e("s_lshr_b32 s53, s52, 2")
        e("s_lshl_b32 s53, s53, 5")
        e("s_and_b32 s52, s52, 3")
        e("s_lshl_b32 s52, s52, 2")
        e("s_add_u32 s52, s52, s53")
        e(f"s_lshl_b32 s53, s{sC}, 7")
        e("s_add_u32 s52, s52, s53")
        e(f"v_add_u32 v{vDA+i}, s52, v{t0}")
        e(f"v_lshlrev_b32 v{vDA+i}, 11, v{vDA+i}")
        e(f"v_xor_b32 v{t2}, {4*i}, v{t1}")
        e(f"v_lshl_add_u32 v{vDA+i}, v{t2}, 4, v{vDA+i}")
        e(f"s_lshl_b32 s52, s{sG}, 6")
        e(f"s_lshl_b32 s53, s{sKh}, 5")
        e("s_add_u32 s52, s52, s53")
        e(f"s_lshl_b32 s53, s{sWn}, 4")
        e("s_add_u32 s52, s52, s53")
        e(f"s_add_u32 s52, s52, {8*i}")
        e(f"v_lshrrev_b32 v{vDB+i}, 3, v{vLane}")
        e(f"v_add_u32 v{vDB+i}, s52, v{vDB+i}")
        e(f"v_lshlrev_b32 v{vDB+i}, 11, v{vDB+i}")
        e(f"v_lshl_add_u32 v{vDB+i}, v{t2}, 4, v{vDB+i}")
    e(f"s_lshl_b32 s{sM0A}, s{sW}, 11")
    e(f"s_add_u32 s{sM0B}, s{sM0A}, 16384")
    def dma(stage, i4):
        slot = stage % NS
        if i4 < 2:
            e(f"s_add_u32 m0, s{sM0A}, {slot*SLOT + i4*1024}")
            e("s_nop 0")
            e(f"buffer_load_dwordx4 v{vDA+i4}, s[{SX}:{SX+3}], s{sK} offen lds")
        else:
            e(f"s_add_u32 m0, s{sM0B}, {slot*SLOT + (i4-2)*1024}")
            e("s_nop 0")
            e(f"buffer_load_dwordx4 v{vDB+i4-2}, s[{SB}:{SB+3}], s{sK} offen lds")
    for st in range(4):
        e(f"s_mov_b32 s{sK}, {st*128}")
        for i4 in range(4):
            dma(st, i4)
    e(f"v_lshrrev_b32 v{t0}, 1, v{vL31}")
    e(f"v_and_b32 v{t0}, 7, v{t0}")
    e(f"v_xor_b32 v{t0}, v{t0}, v{vHh}")
    e(f"s_lshl_b32 s52, s{sKh}, 2")
    for ks in range(2):
        e(f"s_add_u32 s53, s52, {2*ks}")
        e(f"v_xor_b32 v{t1}, s53, v{t0}")
        e(f"v_lshlrev_b32 v{t1}, 4, v{t1}")
        e(f"v_lshl_add_u32 v{t1}, v{vL31}, 7, v{t1}")
        e(f"s_lshl_b32 s53, s{sWm}, 13")
        e(f"v_add_u32 v{vRA+ks*3}, s53, v{t1}")
        e(f"s_lshl_b32 s53, s{sWn}, 13")
        e("s_add_u32 s53, s53, 16384")
        e(f"v_add_u32 v{vRB+ks*3}, s53, v{t1}")
        for gidx in (1, 2):
            e(f"v_add_u32 v{vRA+ks*3+gidx}, {65536*gidx}, v{vRA+ks*3}")
            e(f"v_add_u32 v{vRB+ks*3+gidx}, {65536*gidx}, v{vRB+ks*3}")
    e("s_waitcnt vmcnt(16)")
    cp1(); cp2()
    def rd(stage, ks, fb):
        slot = stage % NS
        gi = slot // 2; off = (slot % 2) * SLOT
        r = []
        for mt in range(2):
            r.append(f"ds_read_b128 v[{fb+mt*4}:{fb+mt*4+3}], v{vRA+ks*3+gi} offset:{off+mt*4096}")
        for nt in range(2):
            r.append(f"ds_read_b128 v[{fb+8+nt*4}:{fb+8+nt*4+3}], v{vRB+ks*3+gi} offset:{off+nt*4096}")
        return r
    def mf(fb, first):
        r = []
        for mt in range(2):
            for nt in range(2):
                a = vAcc + (mt * 2 + nt) * 16
                c = "0" if first else f"v[{a}:{a+15}]"
                r.append(f"v_mfma_f32_32x32x16_bf16 v[{a}:{a+15}], v[{fb+mt*4}:{fb+mt*4+3}], v[{fb+8+nt*4}:{fb+8+nt*4+3}], {c}")
        return r
    e("s_waitcnt vmcnt(8)")
    e("s_barrier")
    for s in rd(0, 0, vFA): e(s)
    e("s_waitcnt lgkmcnt(0)")
    for i in range(NST):
        e(f"; ---- K1 iteration {i}")
        has_dma = i + 4 < NST
        if has_dma:
            e(f"s_mov_b32 s{sK}, {(i+4)*128}")
        rB = rd(i, 1, vFB)
        mA = mf(vFA, i == 0)
        for j in range(4):
            e(mA[j])
            e(rB[j])
            if has_dma and j < 2: dma(i + 4, j)
        if i + 1 < NST:
            rA = rd(i + 1, 0, vFA)
            for s in rA: e(s)
            e("s_waitcnt lgkmcnt(4)")
        else:
            e("s_waitcnt lgkmcnt(0)")
        mB = mf(vFB, False)
        for j in range(4):
            e(mB[j])
            if has_dma and j < 2: dma(i + 4, j + 2)
        last = min(NST - 1, i + 4)
        n = 4 * (last - (i + 2)) if i + 2 <= NST - 1 else None
        if n is not None:
            e(f"s_waitcnt vmcnt({n}) lgkmcnt(0)")
        else:
            e("s_waitcnt lgkmcnt(0)")
        e("s_barrier")
    EB = 0; HB = EB + 4096; XB = 8192; TB = 73728
    vXW = vE; vXR = vE + 1; vEa = vE + 2; vEr = vE + 4; vEi = vE + 5; vt0 = vE + 6; vt1 = vE + 7
    vES = vE + 8
    vHr = vE + 24; vHi = vE + 25; vE2 = vE + 26
    vAd = vE + 28
    e(f"v_lshlrev_b32 v{vXW}, 4, v{vLane}")
    e(f"s_lshl_b32 s52, s{sW}, 13")
    e(f"s_xor_b32 s53, s52, {4<<13}")
    e(f"s_add_u32 s52, s52, {XB}")
    e(f"s_add_u32 s53, s53, {XB}")
    e(f"v_add_u32 v{vXR}, s53, v{vXW}")
    e(f"v_add_u32 v{vXW}, s52, v{vXW}")
    e("s_nop 7")
    e("s_nop 7")
    e(f"s_cmp_eq_u32 s{sKh}, 0")
    e("s_cbranch_scc0 K1_w1")
    for i in range(8):
        e(f"ds_write_b128 v{vXW}, v[{vAcc+32+i*4}:{vAcc+32+i*4+3}] offset:{i*1024}")
    e("s_branch K1_wd")
    e("K1_w1:")
    for i in range(8):
        e(f"ds_write_b128 v{vXW}, v[{vAcc+i*4}:{vAcc+i*4+3}] offset:{i*1024}")
    e("K1_wd:")
    e("s_waitcnt lgkmcnt(0)")
    e("s_barrier")
    for i in range(8):
        e(f"ds_read_b128 v[{vR+i*4}:{vR+i*4+3}], v{vXR} offset:{i*1024}")
    e("s_waitcnt lgkmcnt(0)")
    e(f"s_cmp_eq_u32 s{sKh}, 0")
    e("s_cbranch_scc0 K1_a1")
    for i in range(32):
        e(f"v_add_f32 v{vR+i}, v{vR+i}, v{vAcc+i}")
    e("s_branch K1_ad")
    e("K1_a1:")
    for i in range(32):
        e(f"v_add_f32 v{vR+i}, v{vR+i}, v{vAcc+32+i}")
    e("K1_ad:")
    lr, li = vP, vP + 1
    e(f"v_mov_b32 v{vEr}, v{vR}")
    e(f"v_mov_b32 v{vEi}, v{vR+16}")
    for q in range(1, 16):
        cmad(vEr, vEi, lr, li, vR + q, vR + 16 + q, vt0, vt1)
    e(f"v_add_u32 v{vAd}, s{sT2}, v{vHh}")
    e(f"v_lshlrev_b32 v{vAd}, 9, v{vAd}")
    e(f"v_lshl_add_u32 v{vAd}, v{vL31}, 3, v{vAd}")
    e(f"s_lshl_b32 s52, s{sWn}, 8")
    e(f"v_add_u32 v{vAd}, s52, v{vAd}")
    e(f"ds_write_b64 v{vAd}, v[{vEr}:{vEi}] offset:{EB}")
    e("s_waitcnt lgkmcnt(0)")
    e("s_barrier")
    e(f"s_cmp_lg_u32 s{sW}, 0")
    e("s_cbranch_scc1 K1_lbdone")
    e(f"v_lshlrev_b32 v{vAd}, 3, v{vLane}")
    for s in range(8):
        e(f"ds_read_b64 v[{vES+2*s}:{vES+2*s+1}], v{vAd} offset:{EB+s*512}")
    e("s_waitcnt lgkmcnt(0)")
    for s in range(1, 8):
        cmad(vES, vES + 1, vQ, vQ + 1, vES + 2 * s, vES + 2 * s + 1, vt0, vt1)
    e(f"s_lshl_b32 s52, s{sC}, 4")
    e(f"s_add_u32 s52, s52, s{sG}")
    e("s_lshl_b32 s52, s52, 9")
    e(f"s_add_u32 s52, s52, {8*1024*1024}")
    e(f"v_add_u32 v{vt0}, s52, v{vAd}")
    e(f"buffer_store_dwordx2 v[{vES}:{vES+1}], v{vt0}, s[{SH}:{SH+3}], 0 offen sc0 sc1")
    e("s_waitcnt vmcnt(0)")
    e(f"s_lshl_b32 s52, 1, s{sC}")
    e(f"v_mov_b32 v{vt0}, s52")
    e(f"s_lshl_b32 s53, s{sG}, 2")
    e(f"v_mov_b32 v{vt1}, s53")
    e("s_mov_b64 s[54:55], exec")
    e("s_mov_b64 exec, 1")
    e(f"buffer_atomic_or v{vt0}, v{vt1}, s[{SD}:{SD+3}], 0 offen sc1")
    e("s_mov_b64 exec, s[54:55]")
    e(f"v_mov_b32 v{vHr}, 0")
    e(f"v_mov_b32 v{vHi}, 0")
    e(f"s_cmp_eq_u32 s{sC}, 0")
    e("s_cbranch_scc1 K1_nogather")
    e("s_sub_u32 s52, s52, 1")
    e("s_mov_b32 s56, 0")
    e("K1_poll:")
    e(f"buffer_load_dword v{vt0}, v{vt1}, s[{SD}:{SD+3}], 0 offen sc0 sc1")
    e("s_waitcnt vmcnt(0)")
    e(f"v_readfirstlane_b32 s53, v{vt0}")
    e("s_add_u32 s56, s56, 1")
    e("s_and_b32 s53, s53, s52")
    e("s_cmp_eq_u32 s53, s52")
    e("s_cbranch_scc1 K1_polldone")
    e("s_sleep 1")
    e("s_cmp_lt_u32 s56, 0x400000")
    e("s_cbranch_scc1 K1_poll")
    e("K1_polldone:")
    e(f"s_lshl_b32 s52, s{sG}, 9")
    e(f"s_add_u32 s52, s52, {8*1024*1024}")
    e(f"v_add_u32 v{vt0}, s52, v{vAd}")
    for cp in range(15):
        e(f"s_mov_b32 s53, {cp*8192}")
        e(f"buffer_load_dwordx2 v[{vAcc+2*cp}:{vAcc+2*cp+1}], v{vt0}, s[{SH}:{SH+3}], s53 offen sc0 sc1")
    e("s_waitcnt vmcnt(0)")
    for cp in range(15):
        e(f"s_cmp_le_u32 s{sC}, {cp}")
        e("s_cbranch_scc1 K1_nogather")
        cmad(vHr, vHi, vQ + 2, vQ + 3, vAcc + 2 * cp, vAcc + 2 * cp + 1, vt0, vt1)
    e("K1_nogather:")
    e(f"ds_write_b64 v{vAd}, v[{vHr}:{vHi}] offset:{HB}")
    e("s_waitcnt lgkmcnt(0)")
    e("K1_lbdone:")
    e("s_barrier")
    e(f"v_lshlrev_b32 v{vAd}, 3, v{vL31}")
    e(f"s_lshl_b32 s52, s{sWn}, 8")
    e(f"v_add_u32 v{vAd}, s52, v{vAd}")
    e(f"ds_read_b64 v[{vHr}:{vHi}], v{vAd} offset:{HB}")
    for s in range(6):
        e(f"ds_read_b64 v[{vES+2*s}:{vES+2*s+1}], v{vAd} offset:{EB+s*512}")
    e(f"s_lshl_b32 s52, s{sT2}, 9")
    e(f"v_add_u32 v{vt0}, s52, v{vAd}")
    e(f"ds_read_b64 v[{vE2}:{vE2+1}], v{vt0} offset:{EB}")
    e("s_waitcnt lgkmcnt(0)")
    for s in range(6):
        e(f"s_cmp_le_u32 s{sT2}, {s}")
        e("s_cbranch_scc1 K1_cdone")
        cmad(vHr, vHi, vP + 2, vP + 3, vES + 2 * s, vES + 2 * s + 1, vt0, vt1)
    e("K1_cdone:")
    e("s_mov_b32 s54, 0")
    e("s_mov_b32 s55, -1")
    e("s_mov_b64 exec, s[54:55]")
    cmad(vHr, vHi, vP + 2, vP + 3, vE2, vE2 + 1, vt0, vt1)
    e("s_mov_b64 exec, -1")
    s2r, s2i = vP + 4, vP + 5
    for q in range(16):
        cmad(vHr, vHi, lr, li, vR + q, vR + 16 + q, vt0, vt1)
        e(f"v_mul_f32 v{vAcc+q}, v{s2r}, v{vHr}")
        e(f"v_fma_f32 v{vAcc+q}, -v{s2i}, v{vHi}, v{vAcc+q}")
        e(f"v_mul_f32 v{vAcc+16+q}, v{s2r}, v{vHi}")
        e(f"v_fma_f32 v{vAcc+16+q}, v{s2i}, v{vHr}, v{vAcc+16+q}")
        e(f"v_sub_f32 v{vAcc+16+q}, 0, v{vAcc+16+q}")
    vPk = vAcc + 32
    for p in range(16):
        e(f"v_cvt_pk_bf16_f32 v{vPk+p}, v{vAcc+2*p}, v{vAcc+2*p+1}")
    e(f"s_lshl_b32 s52, s{sW}, 12")
    e(f"s_add_u32 s52, s52, {TB}")
    e(f"v_lshlrev_b32 v{vAd}, 6, v{vL31}")
    e(f"v_lshl_add_u32 v{vAd}, v{vHh}, 5, v{vAd}")
    e(f"v_add_u32 v{vAd}, s52, v{vAd}")
    e(f"ds_write_b128 v{vAd}, v[{vPk}:{vPk+3}]")
    e(f"ds_write_b128 v{vAd}, v[{vPk+4}:{vPk+7}] offset:16")
    e(f"ds_write_b128 v{vAd}, v[{vPk+8}:{vPk+11}] offset:2048")
    e(f"ds_write_b128 v{vAd}, v[{vPk+12}:{vPk+15}] offset:2064")
    e(f"v_lshrrev_b32 v{vt0}, 4, v{vLane}")
    e(f"v_lshrrev_b32 v{vt1}, 2, v{vLane}")
    e(f"v_and_b32 v{vt1}, 3, v{vt1}")
    e(f"v_lshl_add_u32 v{vt1}, v{vt0}, 3, v{vt1}")
    e(f"v_lshlrev_b32 v{vt1}, 6, v{vt1}")
    e(f"v_and_b32 v{vAd}, 3, v{vLane}")
    e(f"v_lshl_add_u32 v{vt1}, v{vAd}, 3, v{vt1}")
    e(f"v_add_u32 v{vt1}, s52, v{vt1}")
    e(f"v_and_b32 v{vAd}, 15, v{vLane}")
    e(f"s_lshl_b32 s52, s{sC}, 7")
    e(f"s_lshl_b32 s53, s{sT2}, 4")
    e("s_add_u32 s52, s52, s53")
    e(f"v_add_u32 v{vAd}, s52, v{vAd}")
    e(f"v_lshlrev_b32 v{vAd}, 12, v{vAd}")
    e(f"v_lshl_add_u32 v{vAd}, v{vt0}, 4, v{vAd}")
    e(f"s_lshl_b32 s52, s{sG}, 7")
    e(f"s_lshl_b32 s53, s{sWn}, 6")
    e("s_add_u32 s52, s52, s53")
    e(f"v_add_u32 v{vAd}, s52, v{vAd}")
    e(f"v_add_u32 v{vt0}, {16*4096}, v{vAd}")
    e("s_waitcnt lgkmcnt(0)")
    vO = vR
    for part in range(2):
        for th in range(2):
            b = vO + (part * 2 + th) * 4
            for u in range(2):
                e(f"ds_read_b64_tr_b16 v[{b+2*u}:{b+2*u+1}], v{vt1} offset:{part*2048 + u*256 + th*32}")
    e("s_waitcnt lgkmcnt(0)")
    for part in range(2):
        for th in range(2):
            b = vO + (part * 2 + th) * 4
            e(f"buffer_store_dwordx4 v[{b}:{b+3}], v{vAd if th == 0 else vt0}, s[{SH}:{SH+3}], 0 offen offset:{part*2048}")
    e("K1_done:")
    e("s_endpgm")

def gen_k2():
    NS = 6; SLOT = 24576; NST = 32; PF = NS - 1
    e(".globl s5_k2_kernel")
    e(".p2align 8")
    e(".type s5_k2_kernel,@function")
    e("s5_k2_kernel:")
    e("s_cmp_ge_u32 s2, 256")
    e("s_cbranch_scc1 K2_done")
    e("s_load_dwordx2 s[4:5], s[0:1], 0")
    e("s_load_dwordx4 s[8:11], s[0:1], 40")
    e("s_load_dwordx4 s[12:15], s[0:1], 64")
    e("s_load_dwordx2 s[16:17], s[0:1], 88")
    sTp, sDp, sW, sKh, sWt, sK, sM0A, sM0B = 44, 45, 46, 47, 48, 49, 50, 51
    SCr, SCi, SH, SO = 20, 24, 28, 32
    e("s_and_b32 s3, s2, 7")
    e("s_lshr_b32 s52, s2, 3")
    e("s_lshr_b32 s53, s3, 1")
    e("s_lshl_b32 s53, s53, 2")
    e("s_lshr_b32 s54, s52, 3")
    e(f"s_add_u32 s{sTp}, s53, s54")
    e("s_and_b32 s53, s3, 1")
    e("s_lshl_b32 s53, s53, 3")
    e("s_and_b32 s54, s52, 7")
    e(f"s_add_u32 s{sDp}, s53, s54")
    vLane = 1; vL31 = 2; vHh = 3
    vDA = 4; vDB = 5
    vRA = 8; vRB = 14
    vX = 20
    vD = 28
    vS = 36
    vT = 52
    vFA = 64
    vFB = 76
    vAcc = 96
    vR = 128
    vOA = 144
    e(f"v_and_b32 v{vLane}, 63, v0")
    e(f"v_lshrrev_b32 v{vT}, 6, v0")
    e("s_nop 0")
    e(f"v_readfirstlane_b32 s{sW}, v{vT}")
    e(f"v_and_b32 v{vL31}, 31, v0")
    e(f"v_lshrrev_b32 v{vHh}, 5, v{vLane}")
    e("s_nop 1")
    e(f"s_lshr_b32 s{sKh}, s{sW}, 2")
    e(f"s_and_b32 s{sWt}, s{sW}, 3")
    e("s_waitcnt lgkmcnt(0)")
    srd(SCr, 8, 1024 * 1024 * 2)
    srd(SCi, 10, 1024 * 1024 * 2)
    srd(SH, 16, 8 * 1024 * 1024)
    srd(SO, 14, 2048 * 1024 * 4)
    t0, t1, t2 = vT, vT + 1, vT + 2
    e(f"s_lshl_b32 s52, s{sTp}, 7")
    e(f"s_lshl_b32 s53, s{sWt}, 5")
    e("s_add_u32 s52, s52, s53")
    e(f"v_add_u32 v{t0}, s52, v{vL31}")
    e(f"s_lshl_b32 s52, s{sDp}, 6")
    e(f"s_lshl_b32 s53, s{sKh}, 5")
    e("s_add_u32 s52, s52, s53")
    e(f"v_lshlrev_b32 v{t1}, 4, v{vHh}")
    e(f"v_add_u32 v{t1}, s52, v{t1}")
    e(f"v_lshlrev_b32 v{t2}, 1, v{t1}")
    e(f"global_load_dwordx4 v[{vD}:{vD+3}], v{t2}, s[12:13]")
    e(f"global_load_dwordx4 v[{vD+4}:{vD+7}], v{t2}, s[12:13] offset:16")
    e(f"v_lshl_add_u32 v{t2}, v{t0}, 11, v{t2}")
    e(f"global_load_dwordx4 v[{vX}:{vX+3}], v{t2}, s[4:5]")
    e(f"global_load_dwordx4 v[{vX+4}:{vX+7}], v{t2}, s[4:5] offset:16")
    e(f"v_lshlrev_b32 v{vOA}, 2, v{t1}")
    e(f"v_lshl_add_u32 v{vOA}, v{t0}, 12, v{vOA}")
    e(f"v_lshrrev_b32 v{t0}, 3, v{vLane}")
    e(f"v_and_b32 v{t0}, 3, v{t0}")
    e(f"v_lshl_add_u32 v{t0}, v{vHh}, 4, v{t0}")
    e(f"v_lshrrev_b32 v{t1}, 4, v{vLane}")
    e(f"v_and_b32 v{t2}, 7, v{vLane}")
    e(f"v_xor_b32 v{t1}, v{t1}, v{t2}")
    e(f"s_lshr_b32 s52, s{sW}, 2")
    e("s_lshl_b32 s52, s52, 5")
    e(f"s_and_b32 s53, s{sW}, 3")
    e("s_lshl_b32 s53, s53, 2")
    e("s_add_u32 s52, s52, s53")
    e(f"s_lshl_b32 s53, s{sDp}, 6")
    e("s_add_u32 s52, s52, s53")
    e(f"v_add_u32 v{vDA}, s52, v{t0}")
    e(f"v_lshlrev_b32 v{vDA}, 11, v{vDA}")
    e(f"s_and_b32 s53, s{sW}, 1")
    e("s_lshl_b32 s53, s53, 2")
    e(f"v_xor_b32 v{t2}, s53, v{t1}")
    e(f"v_lshl_add_u32 v{vDA}, v{t2}, 4, v{vDA}")
    for i in range(2):
        e(f"s_lshl_b32 s52, s{sTp}, 7")
        e(f"s_lshl_b32 s53, s{sW}, 4")
        e("s_add_u32 s52, s52, s53")
        e(f"s_add_u32 s52, s52, {8*i}")
        e(f"v_lshrrev_b32 v{vDB+i}, 3, v{vLane}")
        e(f"v_add_u32 v{vDB+i}, s52, v{vDB+i}")
        e(f"v_lshlrev_b32 v{vDB+i}, 12, v{vDB+i}")
        e(f"v_xor_b32 v{t2}, {4*i}, v{t1}")
        e(f"v_lshl_add_u32 v{vDB+i}, v{t2}, 4, v{vDB+i}")
    e(f"s_lshl_b32 s{sM0A}, s{sW}, 10")
    e(f"s_lshl_b32 s{sM0B}, s{sW}, 11")
    e(f"s_add_u32 s{sM0B}, s{sM0B}, 8192")
    def dma(stage, i3):
        slot = stage % NS
        if i3 == 0:
            e(f"s_mov_b32 s{sK+10}, {(stage%16)*128}")
            e(f"s_add_u32 m0, s{sM0A}, {slot*SLOT}")
            e("s_nop 0")
            S = SCr if stage < 16 else SCi
            e(f"buffer_load_dwordx4 v{vDA}, s[{S}:{S+3}], s{sK+10} offen lds")
        else:
            e(f"s_add_u32 m0, s{sM0B}, {slot*SLOT + (i3-1)*1024}")
            e("s_nop 0")
            e(f"buffer_load_dwordx4 v{vDB+i3-1}, s[{SH}:{SH+3}], s{sK} offen lds")
    for st in range(PF):
        e(f"s_mov_b32 s{sK}, {st*128}")
        for i3 in range(3):
            dma(st, i3)
    e(f"v_lshrrev_b32 v{t0}, 1, v{vL31}")
    e(f"v_and_b32 v{t0}, 7, v{t0}")
    e(f"v_xor_b32 v{t0}, v{t0}, v{vHh}")
    e(f"s_lshl_b32 s52, s{sKh}, 2")
    for ks in range(2):
        e(f"s_add_u32 s53, s52, {2*ks}")
        e(f"v_xor_b32 v{t1}, s53, v{t0}")
        e(f"v_lshlrev_b32 v{t1}, 4, v{t1}")
        e(f"v_lshl_add_u32 v{vRA+ks*3}, v{vL31}, 7, v{t1}")
        e(f"s_lshl_b32 s53, s{sWt}, 12")
        e("s_add_u32 s53, s53, 8192")
        e(f"v_add_u32 v{vRB+ks*3}, s53, v{vRA+ks*3}")
        for gidx in (1, 2):
            e(f"v_add_u32 v{vRA+ks*3+gidx}, {2*SLOT*gidx}, v{vRA+ks*3}")
            e(f"v_add_u32 v{vRB+ks*3+gidx}, {2*SLOT*gidx}, v{vRB+ks*3}")
    e(f"s_waitcnt vmcnt({3*PF})")
    for p in range(8):
        e(f"v_lshlrev_b32 v{t0}, 16, v{vX+p}")
        e(f"v_and_b32 v{t1}, 0xffff0000, v{vX+p}")
        e(f"v_lshlrev_b32 v{t2}, 16, v{vD+p}")
        e(f"v_and_b32 v{t2+1}, 0xffff0000, v{vD+p}")
        e(f"v_mul_f32 v{t0}, v{t0}, v{t2}")
        e(f"v_mul_f32 v{t1}, v{t1}, v{t2+1}")
        e(f"v_cvt_pk_bf16_f32 v{t0}, v{t0}, v{t1}")
        e(f"v_lshlrev_b32 v{vS+2*p}, 16, v{t0}")
        e(f"v_and_b32 v{vS+2*p+1}, 0xffff0000, v{t0}")
    def rd(stage, ks, fb):
        slot = stage % NS
        gi = slot // 2; off = (slot % 2) * SLOT
        r = []
        for mt in range(2):
            r.append(f"ds_read_b128 v[{fb+mt*4}:{fb+mt*4+3}], v{vRA+ks*3+gi} offset:{off+mt*4096}")
        r.append(f"ds_read_b128 v[{fb+8}:{fb+11}], v{vRB+ks*3+gi} offset:{off}")
        return r
    def mf(fb, first):
        r = []
        for mt in range(2):
            a = vAcc + mt * 16
            c = "0" if first else f"v[{a}:{a+15}]"
            r.append(f"v_mfma_f32_32x32x16_bf16 v[{a}:{a+15}], v[{fb+mt*4}:{fb+mt*4+3}], v[{fb+8}:{fb+11}], {c}")
        return r
    e(f"s_waitcnt vmcnt({3*(PF-2)})")
    e("s_barrier")
    for s in rd(0, 0, vFA): e(s)
    e("s_waitcnt lgkmcnt(0)")
    for i in range(NST):
        e(f"; ---- K2 iteration {i}")
        has_dma = i + PF < NST
        if has_dma:
            e(f"s_mov_b32 s{sK}, {(i+PF)*128}")
        rB = rd(i, 1, vFB)
        mA = mf(vFA, i == 0)
        e(mA[0])
        for s in rB: e(s)
        if has_dma: dma(i + PF, 0)
        e(mA[1])
        if has_dma: dma(i + PF, 1)
        if i + 1 < NST:
            for s in rd(i + 1, 0, vFA): e(s)
            e("s_waitcnt lgkmcnt(3)")
        else:
            e("s_waitcnt lgkmcnt(0)")
        mB = mf(vFB, False)
        e(mB[0])
        if has_dma: dma(i + PF, 2)
        e(mB[1])
        last = min(NST - 1, i + PF)
        n = 3 * (last - (i + 2)) if i + 2 <= NST - 1 else None
        if n is not None:
            e(f"s_waitcnt vmcnt({n}) lgkmcnt(0)")
        else:
            e("s_waitcnt lgkmcnt(0)")
        e("s_barrier")
    vXW, vXR = vT, vT + 1
    e(f"v_lshlrev_b32 v{vXW}, 4, v{vLane}")
    e(f"s_lshl_b32 s52, s{sW}, 12")
    e(f"s_xor_b32 s53, s52, {4<<12}")
    e(f"v_add_u32 v{vXR}, s53, v{vXW}")
    e(f"v_add_u32 v{vXW}, s52, v{vXW}")
    e("s_nop 7")
    e("s_nop 7")
    e(f"s_cmp_eq_u32 s{sKh}, 0")
    e("s_cbranch_scc0 K2_w1")
    for i in range(4):
        e(f"ds_write_b128 v{vXW}, v[{vAcc+16+i*4}:{vAcc+16+i*4+3}] offset:{i*1024}")
    for i in range(16):
        e(f"v_add_f32 v{vS+i}, v{vS+i}, v{vAcc+i}")
    e("s_branch K2_wd")
    e("K2_w1:")
    for i in range(4):
        e(f"ds_write_b128 v{vXW}, v[{vAcc+i*4}:{vAcc+i*4+3}] offset:{i*1024}")
    for i in range(16):
        e(f"v_add_f32 v{vS+i}, v{vS+i}, v{vAcc+16+i}")
    e("K2_wd:")
    e("s_waitcnt lgkmcnt(0)")
    e("s_barrier")
    for i in range(4):
        e(f"ds_read_b128 v[{vR+i*4}:{vR+i*4+3}], v{vXR} offset:{i*1024}")
    e("s_waitcnt lgkmcnt(0)")
    for i in range(16):
        e(f"v_add_f32 v{vR+i}, v{vR+i}, v{vS+i}")
    for i in range(4):
        e(f"buffer_store_dwordx4 v[{vR+i*4}:{vR+i*4+3}], v{vOA}, s[{SO}:{SO+3}], 0 offen offset:{i*16}")
    e("K2_done:")
    e("s_endpgm")

def desc(name, vg):
    return f""".amdhsa_kernel {name}
  .amdhsa_next_free_vgpr {vg}
  .amdhsa_next_free_sgpr 96
  .amdhsa_accum_offset {vg}
  .amdhsa_group_segment_fixed_size 0
  .amdhsa_kernarg_size 96
  .amdhsa_user_sgpr_count 2
  .amdhsa_user_sgpr_kernarg_segment_ptr 1
  .amdhsa_system_sgpr_workgroup_id_x 1
  .amdhsa_float_denorm_mode_32 3
.end_amdhsa_kernel
"""

gen_k1()
gen_k2()
out = HDR + "\n".join(L) + "\n.section .rodata,\"a\"\n.p2align 6\n" + desc("s5_k1_kernel", 232) + ".p2align 6\n" + desc("s5_k2_kernel", 152)
path = sys.argv[1] if len(sys.argv) > 1 else "standalone__ssm_conv_s5__prompt.s"
open(path, "w").write(out)
print("wrote", path, len(out), "bytes")
```

```python
import sys, os, struct

L = []
STAMP = os.environ.get("STAMP", "0") == "1"
ROT = int(os.environ.get("ROT", "15"))
def e(s=""):
    L.append("    " + s if s and not s.endswith(":") and not s.startswith(".") and not s.startswith(";") else s)

LOG2E = 0x3fb8aa3b
INV2PI = 0x3e22f983
AGG = 8 * 1024 * 1024
STB = AGG + 131072

HDR = """; Kernarg layout (96 bytes): x, Lambda_re, Lambda_im, B_re, B_im, C_re, C_im, log_dt, Dskip, out, debug, ws
; @launch kernel=s5_k1_kernel grid=(256,1,1) block=(512,1,1) lds=163840
; @launch kernel=s5_k2_kernel grid=(256,1,1) block=(512,1,1) lds=147456
.amdgcn_target "amdgcn-amd-amdhsa--gfx950"
.text
"""

def srd(d, base, size):
    e(f"s_mov_b32 s{d}, s{base}")
    e(f"s_and_b32 s{d+1}, s{base+1}, 0xffff")
    e(f"s_mov_b32 s{d+2}, {size}")
    e(f"s_mov_b32 s{d+3}, 0x00020000")

def stamp(n):
    if STAMP:
        e(f"s_memrealtime s[62:63]")
        e(f"s_memtime s[64:65]")
        e("s_waitcnt lgkmcnt(0)")
        e(f"s_mov_b32 s{70+n}, s62")
        e(f"s_mov_b32 s{78+n}, s64")
def stamp_out(nst, SH, sW, base, vt):
    if not STAMP: return
    e(f"s_cmp_lg_u32 s{sW}, 0")
    e(f"s_cbranch_scc1 STO_{base}")
    e("s_mov_b64 exec, 1")
    e(f"s_lshl_b32 s62, s2, 6")
    e(f"s_add_u32 s62, s62, {base}")
    e(f"v_mov_b32 v{vt}, s62")
    for i in range(nst):
        e(f"v_mov_b32 v{vt+1}, s{70+i}")
        e(f"buffer_store_dword v{vt+1}, v{vt}, s[{SH}:{SH+3}], 0 offen offset:{4*i}")
        e(f"v_mov_b32 v{vt+1}, s{78+i}")
        e(f"buffer_store_dword v{vt+1}, v{vt}, s[{SH}:{SH+3}], 0 offen offset:{32+4*i}")
    e(f"STO_{base}:")

def lam_params(vch, out, tmp, sLre, sLim, sLdt, want):
    e(f"v_lshlrev_b32 v{tmp+3}, 1, v{vch}")
    e(f"global_load_ushort v{tmp}, v{tmp+3}, s[{sLre}:{sLre+1}]")
    e(f"global_load_ushort v{tmp+1}, v{tmp+3}, s[{sLim}:{sLim+1}]")
    e(f"global_load_ushort v{tmp+2}, v{tmp+3}, s[{sLdt}:{sLdt+1}]")
    def compute():
        lre, lim, ldt = tmp, tmp + 1, tmp + 2
        a, b, c, d, f, g = tmp + 3, tmp + 4, tmp + 5, tmp + 6, tmp + 7, tmp + 8
        e(f"v_lshlrev_b32 v{lre}, 16, v{lre}")
        e(f"v_lshlrev_b32 v{lim}, 16, v{lim}")
        e(f"v_lshlrev_b32 v{ldt}, 16, v{ldt}")
        e(f"v_mul_f32 v{a}, {LOG2E:#x}, v{ldt}")
        e(f"v_exp_f32 v{a}, v{a}")
        e("s_nop 0")
        e(f"v_cvt_pk_bf16_f32 v{a}, v{a}, v{a}")
        e(f"v_lshlrev_b32 v{a}, 16, v{a}")
        e(f"v_mul_f32 v{b}, v{a}, v{lre}")
        e(f"v_mul_f32 v{c}, v{a}, v{lim}")
        e(f"v_mul_f32 v{b}, {LOG2E:#x}, v{b}")
        e(f"v_mul_f32 v{c}, {INV2PI:#x}, v{c}")
        for nm, n in (("l1", 1.0), ("l16", 16.0), ("l128", 128.0)):
            if nm + "r" not in want and not (nm == "l1" and "s2r" in want):
                continue
            rr = out.get(nm + "r", tmp + 9); ii = out.get(nm + "i", tmp + 10)
            nb = struct.unpack("<I", struct.pack("<f", n))[0]
            e(f"v_mul_f32 v{d}, {nb:#x}, v{b}")
            e(f"v_mul_f32 v{f}, {nb:#x}, v{c}")
            e(f"v_exp_f32 v{d}, v{d}")
            e(f"v_fract_f32 v{f}, v{f}")
            e(f"v_cos_f32 v{g}, v{f}")
            e(f"v_sin_f32 v{f}, v{f}")
            e("s_nop 0")
            e(f"v_mul_f32 v{rr}, v{d}, v{g}")
            e(f"v_mul_f32 v{ii}, v{d}, v{f}")
            if nm == "l1" and "s2r" in want:
                e(f"v_add_f32 v{d}, -1.0, v{rr}")
                e(f"v_mul_f32 v{f}, v{lre}, v{lre}")
                e(f"v_fma_f32 v{f}, v{lim}, v{lim}, v{f}")
                e(f"v_rcp_f32 v{f}, v{f}")
                e(f"v_mul_f32 v{g}, v{d}, v{lre}")
                e(f"v_fma_f32 v{g}, v{ii}, v{lim}, v{g}")
                e(f"v_mul_f32 v{a}, v{ii}, v{lre}")
                e(f"v_fma_f32 v{a}, -v{d}, v{lim}, v{a}")
                e(f"v_add_f32 v{f}, v{f}, v{f}")
                e(f"v_mul_f32 v{out['s2r']}, v{g}, v{f}")
                e(f"v_mul_f32 v{out['s2i']}, v{a}, v{f}")
    return compute

def cmad(hr, hi, lr, li, br, bi, t0, t1):
    e(f"v_fma_f32 v{t0}, v{lr}, v{hr}, v{br}")
    e(f"v_fma_f32 v{t1}, v{lr}, v{hi}, v{bi}")
    e(f"v_fma_f32 v{t0}, -v{li}, v{hi}, v{t0}")
    e(f"v_fma_f32 v{hi}, v{li}, v{hr}, v{t1}")
    e(f"v_mov_b32 v{hr}, v{t0}")

def decode_wg(sA, sB):
    e("s_and_b32 s3, s2, 7")
    e("s_lshr_b32 s60, s2, 3")
    e("s_lshr_b32 s52, s3, 1")
    e("s_lshl_b32 s52, s52, 2")
    e("s_lshr_b32 s53, s60, 3")
    e(f"s_add_u32 s{sA}, s52, s53")
    e("s_and_b32 s52, s3, 1")
    e("s_lshl_b32 s52, s52, 3")
    e("s_and_b32 s53, s60, 7")
    e(f"s_add_u32 s{sB}, s52, s53")
    e(f"s_and_b32 s60, s60, {ROT}")

def gen_k1():
    NS = 5; SLOT = 32768; NST = 16; PF = 4
    e(".globl s5_k1_kernel")
    e(".p2align 8")
    e(".type s5_k1_kernel,@function")
    e("s5_k1_kernel:")
    e("s_cmp_ge_u32 s2, 256")
    e("s_cbranch_scc1 K1_done")
    e("s_load_dwordx4 s[4:7], s[0:1], 0")
    e("s_load_dwordx4 s[8:11], s[0:1], 16")
    e("s_load_dwordx2 s[12:13], s[0:1], 32")
    e("s_load_dwordx2 s[14:15], s[0:1], 56")
    e("s_load_dwordx4 s[16:19], s[0:1], 80")
    sC, sG, sW, sKh, sWm, sWn, sT2, sK, sM0A, sM0B = 40, 41, 42, 43, 44, 45, 46, 47, 48, 49
    sI, sRd, sRdN, sWr = 36, 37, 38, 39
    SX, SB, SH, SD = 20, 24, 28, 32
    decode_wg(sC, sG)
    vLane = 1; vL31 = 2; vHh = 3
    vDA = 4; vDB = 6
    vRA = 8; vRB = 10
    vA0, vB0, vA1, vB1 = 12, 13, 14, 15
    vP = 20; vQ = 26
    vT = 30; vT2 = 48
    vFA = 64; vFB = 80
    vAcc = 96
    vR = 160
    vE = 192
    e(f"v_and_b32 v{vLane}, 63, v0")
    e(f"v_lshrrev_b32 v{vT}, 6, v0")
    e("s_nop 0")
    e(f"v_readfirstlane_b32 s{sW}, v{vT}")
    e(f"v_and_b32 v{vL31}, 31, v0")
    e(f"v_lshrrev_b32 v{vHh}, 5, v{vLane}")
    t0, t1, t2 = vE, vE + 1, vE + 2
    e(f"v_lshrrev_b32 v{t0}, 3, v{vLane}")
    e(f"v_and_b32 v{t0}, 3, v{t0}")
    e(f"v_lshl_add_u32 v{t0}, v{vHh}, 4, v{t0}")
    e(f"v_lshrrev_b32 v{t1}, 4, v{vLane}")
    e(f"v_and_b32 v{t2}, 7, v{vLane}")
    e(f"v_xor_b32 v{t1}, v{t1}, v{t2}")
    e(f"s_lshr_b32 s{sKh}, s{sW}, 2")
    e(f"s_lshr_b32 s{sWm}, s{sW}, 1")
    e(f"s_and_b32 s{sWm}, s{sWm}, 1")
    e(f"s_and_b32 s{sWn}, s{sW}, 1")
    e(f"s_lshl_b32 s{sT2}, s{sWm}, 1")
    e(f"s_add_u32 s{sT2}, s{sT2}, s{sKh}")
    e(f"s_lshl_b32 s{sT2}, s{sT2}, 1")
    for i in range(2):
        e(f"s_lshl_b32 s52, s{sW}, 1")
        e(f"s_add_u32 s52, s52, {i}")
        e("s_lshr_b32 s53, s52, 2")
        e("s_lshl_b32 s53, s53, 5")
        e("s_and_b32 s52, s52, 3")
        e("s_lshl_b32 s52, s52, 2")
        e("s_add_u32 s52, s52, s53")
        e(f"s_lshl_b32 s53, s{sC}, 7")
        e("s_add_u32 s52, s52, s53")
        e(f"v_add_u32 v{vDA+i}, s52, v{t0}")
        e(f"v_lshlrev_b32 v{vDA+i}, 11, v{vDA+i}")
        e(f"v_xor_b32 v{t2}, {4*i}, v{t1}")
        e(f"v_lshl_add_u32 v{vDA+i}, v{t2}, 4, v{vDA+i}")
        e(f"s_lshl_b32 s52, s{sG}, 6")
        e(f"s_lshl_b32 s53, s{sKh}, 5")
        e("s_add_u32 s52, s52, s53")
        e(f"s_lshl_b32 s53, s{sWn}, 4")
        e("s_add_u32 s52, s52, s53")
        e(f"s_add_u32 s52, s52, {8*i}")
        e(f"v_lshrrev_b32 v{vDB+i}, 3, v{vLane}")
        e(f"v_add_u32 v{vDB+i}, s52, v{vDB+i}")
        e(f"v_lshlrev_b32 v{vDB+i}, 11, v{vDB+i}")
        e(f"v_lshl_add_u32 v{vDB+i}, v{t2}, 4, v{vDB+i}")
    e(f"s_lshl_b32 s{sM0A}, s{sW}, 11")
    e(f"s_add_u32 s{sM0B}, s{sM0A}, 16384")
    e("s_waitcnt lgkmcnt(0)")
    stamp(0)
    srd(SX, 4, 2048 * 1024 * 2)
    e(f"s_cmp_eq_u32 s{sWm}, 0")
    e("s_cselect_b32 s52, s10, s12")
    e("s_cselect_b32 s53, s11, s13")
    srd(SB, 52, 1024 * 1024 * 2)
    def setk_imm(st):
        e(f"s_add_u32 s{sK}, s60, {st}")
        e(f"s_and_b32 s{sK}, s{sK}, 15")
        e(f"s_lshl_b32 s{sK}, s{sK}, 7")
    def dma(i4, slot_imm=None):
        base = sM0A if i4 < 2 else sM0B
        off = (i4 % 2) * 1024
        if slot_imm is not None:
            e(f"s_add_u32 m0, s{base}, {slot_imm*SLOT + off}")
        else:
            e(f"s_add_u32 s61, s{base}, s{sWr}")
            e(f"s_add_u32 m0, s61, {off}")
        e("s_nop 0")
        if i4 < 2:
            e(f"buffer_load_dwordx4 v{vDA+i4}, s[{SX}:{SX+3}], s{sK} offen lds")
        else:
            e(f"buffer_load_dwordx4 v{vDB+i4-2}, s[{SB}:{SB+3}], s{sK} offen lds")
    for st in range(PF):
        setk_imm(st)
        for i4 in range(4):
            dma(i4, st)
    srd(SH, 18, AGG + 131072 + (65536 if STAMP else 0))
    srd(SD, 16, 256)
    e(f"s_lshl_b32 s52, s{sC}, 4")
    e(f"s_add_u32 s52, s52, s{sG}")
    e("s_lshl_b32 s52, s52, 9")
    e(f"s_add_u32 s52, s52, {AGG}")
    e(f"s_lshl_b32 s53, s{sW}, 6")
    e("s_add_u32 s52, s52, s53")
    e(f"v_lshlrev_b32 v{t0}, 2, v{vLane}")
    e(f"v_add_u32 v{t0}, s52, v{t0}")
    e(f"v_mov_b32 v{t1}, -1")
    e("s_mov_b64 exec, 0xffff")
    e(f"buffer_store_dword v{t1}, v{t0}, s[{SH}:{SH+3}], 0 offen sc0 sc1")
    e("s_mov_b64 exec, -1")
    e(f"s_lshl_b32 s52, s{sG}, 6")
    e(f"s_lshl_b32 s53, s{sWn}, 5")
    e("s_add_u32 s53, s53, s52")
    e(f"v_add_u32 v{vT+12}, s53, v{vL31}")
    e(f"v_add_u32 v{vT2+12}, s52, v{vLane}")
    cp1 = lam_params(vT + 12, dict(l1r=vP, l1i=vP+1, l16r=vP+2, l16i=vP+3, s2r=vP+4, s2i=vP+5), vT, 6, 8, 14,
                     {"l1r", "l16r", "s2r"})
    cp2 = lam_params(vT2 + 12, dict(l16r=vQ, l16i=vQ+1, l128r=vQ+2, l128i=vQ+3), vT2, 6, 8, 14, {"l16r", "l128r"})
    e(f"v_lshrrev_b32 v{t0}, 1, v{vL31}")
    e(f"v_and_b32 v{t0}, 7, v{t0}")
    e(f"v_xor_b32 v{t0}, v{t0}, v{vHh}")
    e(f"s_lshl_b32 s52, s{sKh}, 2")
    for ks in range(2):
        e(f"s_add_u32 s53, s52, {2*ks}")
        e(f"v_xor_b32 v{t1}, s53, v{t0}")
        e(f"v_lshlrev_b32 v{t1}, 4, v{t1}")
        e(f"v_lshl_add_u32 v{t1}, v{vL31}, 7, v{t1}")
        e(f"s_lshl_b32 s53, s{sWm}, 13")
        e(f"v_add_u32 v{vRA+ks}, s53, v{t1}")
        e(f"s_lshl_b32 s53, s{sWn}, 13")
        e("s_add_u32 s53, s53, 16384")
        e(f"v_add_u32 v{vRB+ks}, s53, v{t1}")
    for i in range(64):
        e(f"v_mov_b32 v{vAcc+i}, 0")
    e("s_waitcnt vmcnt(0)")
    cp1(); cp2()
    def rd(va, vb, fb):
        r = []
        for mt in range(2):
            r.append(f"ds_read_b128 v[{fb+mt*4}:{fb+mt*4+3}], v{va} offset:{mt*4096}")
        for nt in range(2):
            r.append(f"ds_read_b128 v[{fb+8+nt*4}:{fb+8+nt*4+3}], v{vb} offset:{nt*4096}")
        return r
    def mf(fb):
        r = []
        for mt in range(2):
            for nt in range(2):
                a = vAcc + (mt * 2 + nt) * 16
                r.append(f"v_mfma_f32_32x32x16_bf16 v[{a}:{a+15}], v[{fb+mt*4}:{fb+mt*4+3}], v[{fb+8+nt*4}:{fb+8+nt*4+3}], v[{a}:{a+15}]")
        return r
    e("s_barrier")
    stamp(1)
    e(f"s_lshl_b32 s52, 1, s{sC}")
    e(f"v_mov_b32 v{t0}, s52")
    e(f"s_lshl_b32 s53, s{sG}, 2")
    e(f"v_mov_b32 v{t1}, s53")
    e(f"s_cmp_lg_u32 s{sW}, 0")
    e("s_cbranch_scc1 K1_noflag")
    e("s_mov_b64 exec, 1")
    e(f"buffer_atomic_or v{t0}, v{t1}, s[{SD}:{SD+3}], 0 offen sc1")
    e("s_mov_b64 exec, -1")
    e("K1_noflag:")
    for s in rd(vRA, vRB, vFA): e(s)
    e(f"s_mov_b32 s{sI}, 0")
    e(f"s_mov_b32 s{sRd}, 0")
    e(f"s_mov_b32 s{sRdN}, {SLOT}")
    e(f"s_mov_b32 s{sWr}, {PF*SLOT}")
    e("s_waitcnt lgkmcnt(0)")
    def book(nxt_pf):
        e(f"s_mov_b32 s{sWr}, s{sRd}")
        e(f"s_mov_b32 s{sRd}, s{sRdN}")
        e(f"s_add_u32 s{sRdN}, s{sRdN}, {SLOT}")
        e(f"s_cmp_ge_u32 s{sRdN}, {NS*SLOT}")
        e(f"s_cselect_b32 s{sRdN}, 0, s{sRdN}")
        e(f"s_add_u32 s{sI}, s{sI}, 1")
        e(f"v_add_u32 v{vA1}, s{sRd}, v{vRA+1}")
        e(f"v_add_u32 v{vB1}, s{sRd}, v{vRB+1}")
        e(f"v_add_u32 v{vA0}, s{sRdN}, v{vRA}")
        e(f"v_add_u32 v{vB0}, s{sRdN}, v{vRB}")
        if nxt_pf:
            e(f"s_add_u32 s{sK}, s{sK}, 128")
            e(f"s_and_b32 s{sK}, s{sK}, 2047")
    def body(with_dma, wait):
        rB = rd(vA1, vB1, vFB); mA = mf(vFA)
        e(mA[0]); e(rB[0]); e(rB[1])
        e(mA[1]); e(rB[2]); e(rB[3])
        if with_dma: dma(0)
        e(mA[2])
        if with_dma: dma(1)
        e(mA[3])
        for s_ in rd(vA0, vB0, vFA): e(s_)
        e("s_waitcnt lgkmcnt(4)")
        mB = mf(vFB)
        e(mB[0])
        if with_dma: dma(2)
        e(mB[1])
        if with_dma: dma(3)
        e(mB[2])
        book(with_dma)
        e(mB[3])
        e(wait)
    e(f"v_add_u32 v{vA1}, s{sRd}, v{vRA+1}")
    e(f"v_add_u32 v{vB1}, s{sRd}, v{vRB+1}")
    e(f"v_add_u32 v{vA0}, s{sRdN}, v{vRA}")
    e(f"v_add_u32 v{vB0}, s{sRdN}, v{vRB}")
    setk_imm(PF)
    e("K1_loop:")
    body(True, "s_waitcnt vmcnt(8) lgkmcnt(0)")
    e(f"s_cmp_lt_u32 s{sI}, {NST-PF}")
    e("s_barrier")
    e("s_cbranch_scc1 K1_loop")
    for wt in ("s_waitcnt vmcnt(4) lgkmcnt(0)", "s_waitcnt vmcnt(0) lgkmcnt(0)", "s_waitcnt lgkmcnt(0)", "s_waitcnt lgkmcnt(0)"):
        body(False, wt)
        e("s_barrier")
    stamp(2)
    EB = 0; HB = EB + 4096; XB = 8192; TB = 73728
    vXW = vE; vXR = vE + 1; vFl = vE + 2; vFa = vE + 3; vEr = vE + 4; vEi = vE + 5; vt0 = vE + 6; vt1 = vE + 7
    vES = vE + 8
    vHr = vE + 24; vHi = vE + 25; vE2 = vE + 26
    vAd = vE + 28
    e(f"s_lshl_b32 s53, s{sG}, 2")
    e(f"v_mov_b32 v{vFa}, s53")
    e(f"buffer_load_dword v{vFl}, v{vFa}, s[{SD}:{SD+3}], 0 offen sc0 sc1")
    e(f"v_lshlrev_b32 v{vXW}, 4, v{vLane}")
    e(f"s_lshl_b32 s52, s{sW}, 13")
    e(f"s_xor_b32 s53, s52, {4<<13}")
    e(f"s_add_u32 s52, s52, {XB}")
    e(f"s_add_u32 s53, s53, {XB}")
    e(f"v_add_u32 v{vXR}, s53, v{vXW}")
    e(f"v_add_u32 v{vXW}, s52, v{vXW}")
    e("s_nop 7")
    e(f"s_cmp_eq_u32 s{sKh}, 0")
    e("s_cbranch_scc0 K1_w1")
    for i in range(8):
        e(f"ds_write_b128 v{vXW}, v[{vAcc+32+i*4}:{vAcc+32+i*4+3}] offset:{i*1024}")
    e("s_branch K1_wd")
    e("K1_w1:")
    for i in range(8):
        e(f"ds_write_b128 v{vXW}, v[{vAcc+i*4}:{vAcc+i*4+3}] offset:{i*1024}")
    e("K1_wd:")
    e("s_waitcnt lgkmcnt(0)")
    e("s_barrier")
    for i in range(8):
        e(f"ds_read_b128 v[{vR+i*4}:{vR+i*4+3}], v{vXR} offset:{i*1024}")
    e("s_waitcnt lgkmcnt(0)")
    e(f"s_cmp_eq_u32 s{sKh}, 0")
    e("s_cbranch_scc0 K1_a1")
    for i in range(32):
        e(f"v_add_f32 v{vR+i}, v{vR+i}, v{vAcc+i}")
    e("s_branch K1_ad")
    e("K1_a1:")
    for i in range(32):
        e(f"v_add_f32 v{vR+i}, v{vR+i}, v{vAcc+32+i}")
    e("K1_ad:")
    lr, li = vP, vP + 1
    e(f"v_mov_b32 v{vEr}, v{vR}")
    e(f"v_mov_b32 v{vEi}, v{vR+16}")
    for q in range(1, 16):
        cmad(vEr, vEi, lr, li, vR + q, vR + 16 + q, vt0, vt1)
    e(f"v_add_u32 v{vAd}, s{sT2}, v{vHh}")
    e(f"v_lshlrev_b32 v{vAd}, 9, v{vAd}")
    e(f"v_lshl_add_u32 v{vAd}, v{vL31}, 3, v{vAd}")
    e(f"s_lshl_b32 s52, s{sWn}, 8")
    e(f"v_add_u32 v{vAd}, s52, v{vAd}")
    e(f"ds_write_b64 v{vAd}, v[{vEr}:{vEi}] offset:{EB}")
    e("s_waitcnt lgkmcnt(0)")
    e("s_barrier")
    stamp(3)
    e(f"s_cmp_lg_u32 s{sW}, 0")
    e("s_cbranch_scc1 K1_lbdone")
    e(f"v_lshlrev_b32 v{vAd}, 3, v{vLane}")
    for s in range(8):
        e(f"ds_read_b64 v[{vES+2*s}:{vES+2*s+1}], v{vAd} offset:{EB+s*512}")
    e("s_waitcnt lgkmcnt(0)")
    for s in range(1, 8):
        cmad(vES, vES + 1, vQ, vQ + 1, vES + 2 * s, vES + 2 * s + 1, vt0, vt1)
    e(f"s_lshl_b32 s52, s{sC}, 4")
    e(f"s_add_u32 s52, s52, s{sG}")
    e("s_lshl_b32 s52, s52, 9")
    e(f"s_add_u32 s52, s52, {AGG}")
    e(f"v_add_u32 v{vt0}, s52, v{vAd}")
    e(f"buffer_store_dwordx2 v[{vES}:{vES+1}], v{vt0}, s[{SH}:{SH+3}], 0 offen sc0 sc1")
    e(f"v_mov_b32 v{vHr}, 0")
    e(f"v_mov_b32 v{vHi}, 0")
    e(f"s_cmp_eq_u32 s{sC}, 0")
    e("s_cbranch_scc1 K1_nogather")
    e(f"s_lshl_b32 s52, 1, s{sC}")
    e("s_sub_u32 s52, s52, 1")
    e("s_mov_b32 s56, 0")
    e("s_waitcnt vmcnt(1)")
    e("K1_poll:")
    e(f"v_readfirstlane_b32 s53, v{vFl}")
    e("s_and_b32 s53, s53, s52")
    e("s_cmp_eq_u32 s53, s52")
    e("s_cbranch_scc1 K1_polldone")
    e(f"buffer_load_dword v{vFl}, v{vFa}, s[{SD}:{SD+3}], 0 offen sc0 sc1")
    e("s_add_u32 s56, s56, 1")
    e("s_waitcnt vmcnt(0)")
    e("s_cmp_lt_u32 s56, 0x200000")
    e("s_cbranch_scc1 K1_poll")
    e("K1_polldone:")
    e(f"s_lshl_b32 s52, s{sG}, 9")
    e(f"s_add_u32 s52, s52, {AGG}")
    e(f"v_add_u32 v{vFl}, s52, v{vAd}")
    e("s_mov_b32 s56, 0")
    e("K1_round:")
    for cp in range(15):
        e(f"s_mov_b32 s53, {cp*8192}")
        e(f"buffer_load_dwordx2 v[{vAcc+2*cp}:{vAcc+2*cp+1}], v{vFl}, s[{SH}:{SH+3}], s53 offen sc0 sc1")
    e("s_add_u32 s56, s56, 1")
    e("s_cmp_ge_u32 s56, 0x100000")
    e("s_waitcnt vmcnt(0)")
    e("s_cbranch_scc1 K1_allvalid")
    for cp in range(15):
        e(f"s_cmp_le_u32 s{sC}, {cp}")
        e("s_cbranch_scc1 K1_allvalid")
        e(f"v_cmp_eq_u32 vcc, -1, v{vAcc+2*cp}")
        e(f"v_cmp_eq_u32 s[54:55], -1, v{vAcc+2*cp+1}")
        e("s_or_b64 s[54:55], s[54:55], vcc")
        e("s_cbranch_scc1 K1_round")
    e("K1_allvalid:")
    for cp in range(15):
        e(f"s_cmp_le_u32 s{sC}, {cp}")
        e("s_cbranch_scc1 K1_nogather")
        cmad(vHr, vHi, vQ + 2, vQ + 3, vAcc + 2 * cp, vAcc + 2 * cp + 1, vt0, vt1)
    e("K1_nogather:")
    e(f"ds_write_b64 v{vAd}, v[{vHr}:{vHi}] offset:{HB}")
    e("s_waitcnt lgkmcnt(0)")
    e("K1_lbdone:")
    e("s_barrier")
    stamp(4)
    e(f"v_lshlrev_b32 v{vAd}, 3, v{vL31}")
    e(f"s_lshl_b32 s52, s{sWn}, 8")
    e(f"v_add_u32 v{vAd}, s52, v{vAd}")
    e(f"ds_read_b64 v[{vHr}:{vHi}], v{vAd} offset:{HB}")
    for s in range(6):
        e(f"ds_read_b64 v[{vES+2*s}:{vES+2*s+1}], v{vAd} offset:{EB+s*512}")
    e(f"s_lshl_b32 s52, s{sT2}, 9")
    e(f"v_add_u32 v{vt0}, s52, v{vAd}")
    e(f"ds_read_b64 v[{vE2}:{vE2+1}], v{vt0} offset:{EB}")
    e("s_waitcnt lgkmcnt(0)")
    for s in range(6):
        e(f"s_cmp_le_u32 s{sT2}, {s}")
        e("s_cbranch_scc1 K1_cdone")
        cmad(vHr, vHi, vP + 2, vP + 3, vES + 2 * s, vES + 2 * s + 1, vt0, vt1)
    e("K1_cdone:")
    e("s_mov_b32 s54, 0")
    e("s_mov_b32 s55, -1")
    e("s_mov_b64 exec, s[54:55]")
    cmad(vHr, vHi, vP + 2, vP + 3, vE2, vE2 + 1, vt0, vt1)
    e("s_mov_b64 exec, -1")
    s2r, s2i = vP + 4, vP + 5
    for q in range(16):
        cmad(vHr, vHi, lr, li, vR + q, vR + 16 + q, vt0, vt1)
        e(f"v_mul_f32 v{vAcc+q}, v{s2r}, v{vHr}")
        e(f"v_fma_f32 v{vAcc+q}, -v{s2i}, v{vHi}, v{vAcc+q}")
        e(f"v_mul_f32 v{vAcc+16+q}, -v{s2r}, v{vHi}")
        e(f"v_fma_f32 v{vAcc+16+q}, -v{s2i}, v{vHr}, v{vAcc+16+q}")
    vPk = vAcc + 32
    for p in range(16):
        e(f"v_cvt_pk_bf16_f32 v{vPk+p}, v{vAcc+2*p}, v{vAcc+2*p+1}")
    e(f"s_lshl_b32 s52, s{sW}, 12")
    e(f"s_add_u32 s52, s52, {TB}")
    e(f"v_lshlrev_b32 v{vAd}, 6, v{vL31}")
    e(f"v_lshl_add_u32 v{vAd}, v{vHh}, 5, v{vAd}")
    e(f"v_add_u32 v{vAd}, s52, v{vAd}")
    e(f"ds_write_b128 v{vAd}, v[{vPk}:{vPk+3}]")
    e(f"ds_write_b128 v{vAd}, v[{vPk+4}:{vPk+7}] offset:16")
    e(f"ds_write_b128 v{vAd}, v[{vPk+8}:{vPk+11}] offset:2048")
    e(f"ds_write_b128 v{vAd}, v[{vPk+12}:{vPk+15}] offset:2064")
    e(f"v_lshrrev_b32 v{vt0}, 4, v{vLane}")
    e(f"v_lshrrev_b32 v{vt1}, 2, v{vLane}")
    e(f"v_and_b32 v{vt1}, 3, v{vt1}")
    e(f"v_lshl_add_u32 v{vt1}, v{vt0}, 3, v{vt1}")
    e(f"v_lshlrev_b32 v{vt1}, 6, v{vt1}")
    e(f"v_and_b32 v{vAd}, 3, v{vLane}")
    e(f"v_lshl_add_u32 v{vt1}, v{vAd}, 3, v{vt1}")
    e(f"v_add_u32 v{vt1}, s52, v{vt1}")
    e(f"v_and_b32 v{vAd}, 15, v{vLane}")
    e(f"s_lshl_b32 s52, s{sC}, 7")
    e(f"s_lshl_b32 s53, s{sT2}, 4")
    e("s_add_u32 s52, s52, s53")
    e(f"v_add_u32 v{vAd}, s52, v{vAd}")
    e(f"v_lshlrev_b32 v{vAd}, 12, v{vAd}")
    e(f"v_lshl_add_u32 v{vAd}, v{vt0}, 4, v{vAd}")
    e(f"s_lshl_b32 s52, s{sG}, 7")
    e(f"s_lshl_b32 s53, s{sWn}, 6")
    e("s_add_u32 s52, s52, s53")
    e(f"v_add_u32 v{vAd}, s52, v{vAd}")
    e(f"v_add_u32 v{vt0}, {16*4096}, v{vAd}")
    e("s_waitcnt lgkmcnt(0)")
    vO = vR
    for part in range(2):
        for th in range(2):
            b = vO + (part * 2 + th) * 4
            for u in range(2):
                e(f"ds_read_b64_tr_b16 v[{b+2*u}:{b+2*u+1}], v{vt1} offset:{part*2048 + u*256 + th*32}")
    e("s_waitcnt lgkmcnt(0)")
    for part in range(2):
        for th in range(2):
            b = vO + (part * 2 + th) * 4
            e(f"buffer_store_dwordx4 v[{b}:{b+3}], v{vAd if th == 0 else vt0}, s[{SH}:{SH+3}], 0 offen offset:{part*2048}")
    stamp(5)
    stamp_out(6, SH, sW, STB, vE)
    e("K1_done:")
    e("s_endpgm")

def gen_k2():
    NS = 6; SLOT = 24576; NST = 32; PF = NS - 1
    e(".globl s5_k2_kernel")
    e(".p2align 8")
    e(".type s5_k2_kernel,@function")
    e("s5_k2_kernel:")
    e("s_cmp_ge_u32 s2, 256")
    e("s_cbranch_scc1 K2_done")
    e("s_load_dwordx2 s[4:5], s[0:1], 0")
    e("s_load_dwordx4 s[8:11], s[0:1], 40")
    e("s_load_dwordx4 s[12:15], s[0:1], 64")
    e("s_load_dwordx2 s[16:17], s[0:1], 88")
    sTp, sDp, sW, sKh, sWt, sK, sKC, sM0A, sM0B = 44, 45, 46, 47, 48, 49, 59, 50, 51
    sI, sRd, sRdN, sWr = 36, 37, 38, 39
    SC, SH, SO = 20, 28, 32
    decode_wg(sTp, sDp)
    vLane = 1; vL31 = 2; vHh = 3
    vDA = 4; vDB = 5
    vRA = 8; vRB = 10
    vA0, vB0, vA1, vB1 = 12, 13, 14, 15
    vX = 20; vD = 28; vS = 36; vT = 52
    vFA = 64; vFB = 76
    vAcc = 96; vR = 128; vOA = 144
    t0, t1, t2 = vT, vT + 1, vT + 2
    e(f"v_and_b32 v{vLane}, 63, v0")
    e(f"v_lshrrev_b32 v{vT}, 6, v0")
    e("s_nop 0")
    e(f"v_readfirstlane_b32 s{sW}, v{vT}")
    e(f"v_and_b32 v{vL31}, 31, v0")
    e(f"v_lshrrev_b32 v{vHh}, 5, v{vLane}")
    e(f"v_lshrrev_b32 v{t0}, 3, v{vLane}")
    e(f"v_and_b32 v{t0}, 3, v{t0}")
    e(f"v_lshl_add_u32 v{t0}, v{vHh}, 4, v{t0}")
    e(f"v_lshrrev_b32 v{t1}, 4, v{vLane}")
    e(f"v_and_b32 v{t2}, 7, v{vLane}")
    e(f"v_xor_b32 v{t1}, v{t1}, v{t2}")
    e(f"s_lshr_b32 s{sKh}, s{sW}, 2")
    e(f"s_and_b32 s{sWt}, s{sW}, 3")
    e(f"s_lshl_b32 s52, s{sKh}, 5")
    e(f"s_lshl_b32 s53, s{sWt}, 2")
    e("s_add_u32 s52, s52, s53")
    e(f"s_lshl_b32 s53, s{sDp}, 6")
    e("s_add_u32 s52, s52, s53")
    e(f"v_add_u32 v{vDA}, s52, v{t0}")
    e(f"v_lshlrev_b32 v{vDA}, 11, v{vDA}")
    e(f"s_and_b32 s53, s{sW}, 1")
    e("s_lshl_b32 s53, s53, 2")
    e(f"v_xor_b32 v{t2}, s53, v{t1}")
    e(f"v_lshl_add_u32 v{vDA}, v{t2}, 4, v{vDA}")
    for i in range(2):
        e(f"s_lshl_b32 s52, s{sTp}, 7")
        e(f"s_lshl_b32 s53, s{sW}, 4")
        e("s_add_u32 s52, s52, s53")
        e(f"s_add_u32 s52, s52, {8*i}")
        e(f"v_lshrrev_b32 v{vDB+i}, 3, v{vLane}")
        e(f"v_add_u32 v{vDB+i}, s52, v{vDB+i}")
        e(f"v_lshlrev_b32 v{vDB+i}, 12, v{vDB+i}")
        e(f"v_xor_b32 v{t2}, {4*i}, v{t1}")
        e(f"v_lshl_add_u32 v{vDB+i}, v{t2}, 4, v{vDB+i}")
    e(f"s_lshl_b32 s{sM0A}, s{sW}, 10")
    e(f"s_lshl_b32 s{sM0B}, s{sW}, 11")
    e(f"s_add_u32 s{sM0B}, s{sM0B}, 8192")
    e("s_waitcnt lgkmcnt(0)")
    stamp(0)
    srd(SC, 8, 1024 * 1024 * 2)
    srd(SH, 16, AGG + (131072 + 65536 if STAMP else 0))
    def dma(i3, slot_imm=None):
        base = sM0A if i3 == 0 else sM0B
        off = 0 if i3 == 0 else (i3 - 1) * 1024
        if slot_imm is not None:
            e(f"s_add_u32 m0, s{base}, {slot_imm*SLOT + off}")
        else:
            e(f"s_add_u32 s61, s{base}, s{sWr}")
            e(f"s_add_u32 m0, s61, {off}")
        e("s_nop 0")
        if i3 == 0:
            e(f"buffer_load_dwordx4 v{vDA}, s[{SC}:{SC+3}], s{sKC} offen lds")
        else:
            e(f"buffer_load_dwordx4 v{vDB+i3-1}, s[{SH}:{SH+3}], s{sK} offen lds")
    for st in range(PF):
        e(f"s_add_u32 s{sKC}, s60, {st}")
        e(f"s_and_b32 s{sKC}, s{sKC}, 15")
        e(f"s_lshl_b32 s{sKC}, s{sKC}, 7")
        e(f"s_mov_b32 s{sK}, s{sKC}")
        for i3 in range(3):
            dma(i3, st)
    srd(SO, 14, 2048 * 1024 * 4)
    e(f"s_lshl_b32 s52, s{sTp}, 7")
    e(f"s_lshl_b32 s53, s{sWt}, 5")
    e("s_add_u32 s52, s52, s53")
    e(f"v_add_u32 v{t0}, s52, v{vL31}")
    e(f"s_lshl_b32 s52, s{sDp}, 6")
    e(f"s_lshl_b32 s53, s{sKh}, 5")
    e("s_add_u32 s52, s52, s53")
    e(f"v_lshlrev_b32 v{t1}, 4, v{vHh}")
    e(f"v_add_u32 v{t1}, s52, v{t1}")
    e(f"v_lshlrev_b32 v{t2}, 1, v{t1}")
    e(f"global_load_dwordx4 v[{vD}:{vD+3}], v{t2}, s[12:13]")
    e(f"global_load_dwordx4 v[{vD+4}:{vD+7}], v{t2}, s[12:13] offset:16")
    e(f"v_lshl_add_u32 v{t2}, v{t0}, 11, v{t2}")
    e(f"global_load_dwordx4 v[{vX}:{vX+3}], v{t2}, s[4:5]")
    e(f"global_load_dwordx4 v[{vX+4}:{vX+7}], v{t2}, s[4:5] offset:16")
    e(f"v_lshlrev_b32 v{vOA}, 2, v{t1}")
    e(f"v_lshl_add_u32 v{vOA}, v{t0}, 12, v{vOA}")
    e(f"v_lshrrev_b32 v{t0}, 1, v{vL31}")
    e(f"v_and_b32 v{t0}, 7, v{t0}")
    e(f"v_xor_b32 v{t0}, v{t0}, v{vHh}")
    e(f"s_lshl_b32 s52, s{sKh}, 2")
    for ks in range(2):
        e(f"s_add_u32 s53, s52, {2*ks}")
        e(f"v_xor_b32 v{t1}, s53, v{t0}")
        e(f"v_lshlrev_b32 v{t1}, 4, v{t1}")
        e(f"v_lshl_add_u32 v{vRA+ks}, v{vL31}, 7, v{t1}")
        e(f"s_lshl_b32 s53, s{sWt}, 12")
        e("s_add_u32 s53, s53, 8192")
        e(f"v_add_u32 v{vRB+ks}, s53, v{vRA+ks}")
    for i in range(32):
        e(f"v_mov_b32 v{vAcc+i}, 0")
    e("s_waitcnt vmcnt(0)")
    for p in range(8):
        e(f"v_lshlrev_b32 v{t0}, 16, v{vX+p}")
        e(f"v_and_b32 v{t1}, 0xffff0000, v{vX+p}")
        e(f"v_lshlrev_b32 v{t2}, 16, v{vD+p}")
        e(f"v_and_b32 v{t2+1}, 0xffff0000, v{vD+p}")
        e(f"v_mul_f32 v{t0}, v{t0}, v{t2}")
        e(f"v_mul_f32 v{t1}, v{t1}, v{t2+1}")
        e(f"v_cvt_pk_bf16_f32 v{t0}, v{t0}, v{t1}")
        e(f"v_lshlrev_b32 v{vS+2*p}, 16, v{t0}")
        e(f"v_and_b32 v{vS+2*p+1}, 0xffff0000, v{t0}")
    def rd(va, vb, fb):
        r = []
        for mt in range(2):
            r.append(f"ds_read_b128 v[{fb+mt*4}:{fb+mt*4+3}], v{va} offset:{mt*4096}")
        r.append(f"ds_read_b128 v[{fb+8}:{fb+11}], v{vb}")
        return r
    def mf(fb):
        r = []
        for mt in range(2):
            a = vAcc + mt * 16
            r.append(f"v_mfma_f32_32x32x16_bf16 v[{a}:{a+15}], v[{fb+mt*4}:{fb+mt*4+3}], v[{fb+8}:{fb+11}], v[{a}:{a+15}]")
        return r
    e("s_barrier")
    stamp(1)
    for s in rd(vRA, vRB, vFA): e(s)
    e(f"s_mov_b32 s{sI}, 0")
    e(f"s_mov_b32 s{sRd}, 0")
    e(f"s_mov_b32 s{sRdN}, {SLOT}")
    e(f"s_mov_b32 s{sWr}, {PF*SLOT}")
    e("s_waitcnt lgkmcnt(0)")
    def book(nxt_pf):
        e(f"s_mov_b32 s{sWr}, s{sRd}")
        e(f"s_mov_b32 s{sRd}, s{sRdN}")
        e(f"s_add_u32 s{sRdN}, s{sRdN}, {SLOT}")
        e(f"s_cmp_ge_u32 s{sRdN}, {NS*SLOT}")
        e(f"s_cselect_b32 s{sRdN}, 0, s{sRdN}")
        e(f"s_add_u32 s{sI}, s{sI}, 1")
        e(f"v_add_u32 v{vA1}, s{sRd}, v{vRA+1}")
        e(f"v_add_u32 v{vB1}, s{sRd}, v{vRB+1}")
        e(f"v_add_u32 v{vA0}, s{sRdN}, v{vRA}")
        e(f"v_add_u32 v{vB0}, s{sRdN}, v{vRB}")
        if nxt_pf:
            e(f"s_add_u32 s{sKC}, s{sKC}, 128")
            e(f"s_and_b32 s{sKC}, s{sKC}, 2047")
            e(f"s_cmp_ge_u32 s{sI}, {16-PF}")
            e(f"s_cselect_b32 s{SC}, s10, s8")
            e(f"s_cselect_b32 s53, s11, s9")
            e(f"s_cselect_b32 s{sK}, 2048, 0")
            e(f"s_and_b32 s{SC+1}, s53, 0xffff")
            e(f"s_add_u32 s{sK}, s{sK}, s{sKC}")
    def body(with_dma, wait):
        rB = rd(vA1, vB1, vFB); mA = mf(vFA)
        e(mA[0])
        for s_ in rB: e(s_)
        if with_dma: dma(0)
        e(mA[1])
        for s_ in rd(vA0, vB0, vFA): e(s_)
        if with_dma: dma(1)
        e("s_waitcnt lgkmcnt(3)")
        mB = mf(vFB)
        e(mB[0])
        if with_dma: dma(2)
        book(with_dma)
        e(mB[1])
        e(wait)
    e(f"v_add_u32 v{vA1}, s{sRd}, v{vRA+1}")
    e(f"v_add_u32 v{vB1}, s{sRd}, v{vRB+1}")
    e(f"v_add_u32 v{vA0}, s{sRdN}, v{vRA}")
    e(f"v_add_u32 v{vB0}, s{sRdN}, v{vRB}")
    e(f"s_add_u32 s{sKC}, s60, {PF}")
    e(f"s_and_b32 s{sKC}, s{sKC}, 15")
    e(f"s_lshl_b32 s{sKC}, s{sKC}, 7")
    e(f"s_mov_b32 s{sK}, s{sKC}")
    e("K2_loop:")
    body(True, f"s_waitcnt vmcnt({3*(PF-2)}) lgkmcnt(0)")
    e(f"s_cmp_lt_u32 s{sI}, {NST-PF}")
    e("s_barrier")
    e("s_cbranch_scc1 K2_loop")
    for j in range(PF):
        n = 3 * (PF - 3 - j)
        body(False, f"s_waitcnt vmcnt({n}) lgkmcnt(0)" if n >= 0 else "s_waitcnt lgkmcnt(0)")
        e("s_barrier")
    stamp(2)
    vXW, vXR = vT, vT + 1
    e(f"v_lshlrev_b32 v{vXW}, 4, v{vLane}")
    e(f"s_lshl_b32 s52, s{sW}, 12")
    e(f"s_xor_b32 s53, s52, {4<<12}")
    e(f"v_add_u32 v{vXR}, s53, v{vXW}")
    e(f"v_add_u32 v{vXW}, s52, v{vXW}")
    e("s_nop 7")
    e("s_nop 3")
    e(f"s_cmp_eq_u32 s{sKh}, 0")
    e("s_cbranch_scc0 K2_w1")
    for i in range(4):
        e(f"ds_write_b128 v{vXW}, v[{vAcc+16+i*4}:{vAcc+16+i*4+3}] offset:{i*1024}")
    for i in range(16):
        e(f"v_add_f32 v{vS+i}, v{vS+i}, v{vAcc+i}")
    e("s_branch K2_wd")
    e("K2_w1:")
    for i in range(4):
        e(f"ds_write_b128 v{vXW}, v[{vAcc+i*4}:{vAcc+i*4+3}] offset:{i*1024}")
    for i in range(16):
        e(f"v_add_f32 v{vS+i}, v{vS+i}, v{vAcc+16+i}")
    e("K2_wd:")
    e("s_waitcnt lgkmcnt(0)")
    e("s_barrier")
    for i in range(4):
        e(f"ds_read_b128 v[{vR+i*4}:{vR+i*4+3}], v{vXR} offset:{i*1024}")
    e("s_waitcnt lgkmcnt(0)")
    for i in range(16):
        e(f"v_add_f32 v{vR+i}, v{vR+i}, v{vS+i}")
    for i in range(4):
        e(f"buffer_store_dwordx4 v[{vR+i*4}:{vR+i*4+3}], v{vOA}, s[{SO}:{SO+3}], 0 offen offset:{i*16}")
    stamp(3)
    stamp_out(4, SH, sW, STB + 32768, vT)
    e("K2_done:")
    e("s_endpgm")

def desc(name, vg):
    return f""".amdhsa_kernel {name}
  .amdhsa_next_free_vgpr {vg}
  .amdhsa_next_free_sgpr 96
  .amdhsa_accum_offset {vg}
  .amdhsa_group_segment_fixed_size 0
  .amdhsa_kernarg_size 96
  .amdhsa_user_sgpr_count 2
  .amdhsa_user_sgpr_kernarg_segment_ptr 1
  .amdhsa_system_sgpr_workgroup_id_x 1
  .amdhsa_float_denorm_mode_32 3
.end_amdhsa_kernel
"""

gen_k1()
gen_k2()
out = HDR + "\n".join(L) + "\n.section .rodata,\"a\"\n.p2align 6\n" + desc("s5_k1_kernel", 232) + ".p2align 6\n" + desc("s5_k2_kernel", 152)
path = sys.argv[1] if len(sys.argv) > 1 else "standalone__ssm_conv_s5__prompt.s"
open(path, "w").write(out)
print("wrote", path, len(out), "bytes")
```

```python
import sys, os, struct

L = []
STAMP = os.environ.get("STAMP", "0") == "1"
ROT = int(os.environ.get("ROT", "15"))
def e(s=""):
    L.append("    " + s if s and not s.endswith(":") and not s.startswith(".") and not s.startswith(";") else s)

LOG2E = 0x3fb8aa3b
INV2PI = 0x3e22f983
AGG = 8 * 1024 * 1024
STB = AGG + 131072

HDR = """; Kernarg layout (96 bytes): x, Lambda_re, Lambda_im, B_re, B_im, C_re, C_im, log_dt, Dskip, out, debug, ws
; @launch kernel=s5_k1_kernel grid=(256,1,1) block=(512,1,1) lds=163840
; @launch kernel=s5_k2_kernel grid=(256,1,1) block=(512,1,1) lds=147456
.amdgcn_target "amdgcn-amd-amdhsa--gfx950"
.text
"""

def srd(d, base, size):
    e(f"s_mov_b32 s{d}, s{base}")
    e(f"s_and_b32 s{d+1}, s{base+1}, 0xffff")
    e(f"s_mov_b32 s{d+2}, {size}")
    e(f"s_mov_b32 s{d+3}, 0x00020000")

def stamp(n):
    if STAMP:
        e(f"s_memrealtime s[62:63]")
        e(f"s_memtime s[64:65]")
        e("s_waitcnt lgkmcnt(0)")
        e(f"s_mov_b32 s{70+n}, s62")
        e(f"s_mov_b32 s{78+n}, s64")
def stamp_out(nst, SH, sW, base, vt):
    if not STAMP: return
    e(f"s_cmp_lg_u32 s{sW}, 0")
    e(f"s_cbranch_scc1 STO_{base}")
    e("s_mov_b64 exec, 1")
    e(f"s_lshl_b32 s62, s2, 6")
    e(f"s_add_u32 s62, s62, {base}")
    e(f"v_mov_b32 v{vt}, s62")
    for i in range(nst):
        e(f"v_mov_b32 v{vt+1}, s{70+i}")
        e(f"buffer_store_dword v{vt+1}, v{vt}, s[{SH}:{SH+3}], 0 offen offset:{4*i}")
        e(f"v_mov_b32 v{vt+1}, s{78+i}")
        e(f"buffer_store_dword v{vt+1}, v{vt}, s[{SH}:{SH+3}], 0 offen offset:{32+4*i}")
    e(f"STO_{base}:")

def lam_params(vch, out, tmp, sLre, sLim, sLdt, want):
    e(f"v_lshlrev_b32 v{tmp+3}, 1, v{vch}")
    e(f"global_load_ushort v{tmp}, v{tmp+3}, s[{sLre}:{sLre+1}]")
    e(f"global_load_ushort v{tmp+1}, v{tmp+3}, s[{sLim}:{sLim+1}]")
    e(f"global_load_ushort v{tmp+2}, v{tmp+3}, s[{sLdt}:{sLdt+1}]")
    def compute():
        lre, lim, ldt = tmp, tmp + 1, tmp + 2
        a, b, c, d, f, g = tmp + 3, tmp + 4, tmp + 5, tmp + 6, tmp + 7, tmp + 8
        e(f"v_lshlrev_b32 v{lre}, 16, v{lre}")
        e(f"v_lshlrev_b32 v{lim}, 16, v{lim}")
        e(f"v_lshlrev_b32 v{ldt}, 16, v{ldt}")
        e(f"v_mul_f32 v{a}, {LOG2E:#x}, v{ldt}")
        e(f"v_exp_f32 v{a}, v{a}")
        e("s_nop 0")
        e(f"v_cvt_pk_bf16_f32 v{a}, v{a}, v{a}")
        e(f"v_lshlrev_b32 v{a}, 16, v{a}")
        e(f"v_mul_f32 v{b}, v{a}, v{lre}")
        e(f"v_mul_f32 v{c}, v{a}, v{lim}")
        e(f"v_mul_f32 v{b}, {LOG2E:#x}, v{b}")
        e(f"v_mul_f32 v{c}, {INV2PI:#x}, v{c}")
        for nm, n in (("l1", 1.0), ("l16", 16.0), ("l128", 128.0)):
            if nm + "r" not in want and not (nm == "l1" and "s2r" in want):
                continue
            rr = out.get(nm + "r", tmp + 9); ii = out.get(nm + "i", tmp + 10)
            nb = struct.unpack("<I", struct.pack("<f", n))[0]
            e(f"v_mul_f32 v{d}, {nb:#x}, v{b}")
            e(f"v_mul_f32 v{f}, {nb:#x}, v{c}")
            e(f"v_exp_f32 v{d}, v{d}")
            e(f"v_fract_f32 v{f}, v{f}")
            e(f"v_cos_f32 v{g}, v{f}")
            e(f"v_sin_f32 v{f}, v{f}")
            e("s_nop 0")
            e(f"v_mul_f32 v{rr}, v{d}, v{g}")
            e(f"v_mul_f32 v{ii}, v{d}, v{f}")
            if nm == "l1" and "s2r" in want:
                e(f"v_add_f32 v{d}, -1.0, v{rr}")
                e(f"v_mul_f32 v{f}, v{lre}, v{lre}")
                e(f"v_fma_f32 v{f}, v{lim}, v{lim}, v{f}")
                e(f"v_rcp_f32 v{f}, v{f}")
                e(f"v_mul_f32 v{g}, v{d}, v{lre}")
                e(f"v_fma_f32 v{g}, v{ii}, v{lim}, v{g}")
                e(f"v_mul_f32 v{a}, v{ii}, v{lre}")
                e(f"v_fma_f32 v{a}, -v{d}, v{lim}, v{a}")
                e(f"v_add_f32 v{f}, v{f}, v{f}")
                e(f"v_mul_f32 v{out['s2r']}, v{g}, v{f}")
                e(f"v_mul_f32 v{out['s2i']}, v{a}, v{f}")
    return compute

def cmad(hr, hi, lr, li, br, bi, t0, t1):
    e(f"v_fma_f32 v{t0}, v{lr}, v{hr}, v{br}")
    e(f"v_fma_f32 v{t1}, v{lr}, v{hi}, v{bi}")
    e(f"v_fma_f32 v{t0}, -v{li}, v{hi}, v{t0}")
    e(f"v_fma_f32 v{hi}, v{li}, v{hr}, v{t1}")
    e(f"v_mov_b32 v{hr}, v{t0}")

def decode_wg(sA, sB):
    e("s_and_b32 s3, s2, 7")
    e("s_lshr_b32 s60, s2, 3")
    e("s_lshr_b32 s52, s3, 1")
    e("s_lshl_b32 s52, s52, 2")
    e("s_lshr_b32 s53, s60, 3")
    e(f"s_add_u32 s{sA}, s52, s53")
    e("s_and_b32 s52, s3, 1")
    e("s_lshl_b32 s52, s52, 3")
    e("s_and_b32 s53, s60, 7")
    e(f"s_add_u32 s{sB}, s52, s53")
    e(f"s_and_b32 s60, s60, {ROT}")

def gen_k1():
    NS = 5; SLOT = 32768; NST = 16; PF = 4
    e(".globl s5_k1_kernel")
    e(".p2align 8")
    e(".type s5_k1_kernel,@function")
    e("s5_k1_kernel:")
    e("s_cmp_ge_u32 s2, 256")
    e("s_cbranch_scc1 K1_done")
    e("s_load_dwordx4 s[4:7], s[0:1], 0")
    e("s_load_dwordx4 s[8:11], s[0:1], 16")
    e("s_load_dwordx2 s[12:13], s[0:1], 32")
    e("s_load_dwordx2 s[14:15], s[0:1], 56")
    e("s_load_dwordx4 s[16:19], s[0:1], 80")
    sC, sG, sW, sKh, sWm, sWn, sT2, sK, sM0A, sM0B = 40, 41, 42, 43, 44, 45, 46, 47, 48, 49
    sI, sRd, sRdN, sWr = 36, 37, 38, 39
    SX, SB, SH, SD = 20, 24, 28, 32
    decode_wg(sC, sG)
    vLane = 1; vL31 = 2; vHh = 3
    vDA = 4; vDB = 6
    vRA = 8; vRB = 10
    vA0, vB0, vA1, vB1 = 12, 13, 14, 15
    vP = 20; vQ = 26
    vT = 30; vT2 = 48
    vFA = 64; vFB = 80
    vAcc = 96
    vR = 160
    vE = 192
    e(f"v_and_b32 v{vLane}, 63, v0")
    e(f"v_lshrrev_b32 v{vT}, 6, v0")
    e("s_nop 0")
    e(f"v_readfirstlane_b32 s{sW}, v{vT}")
    e(f"v_and_b32 v{vL31}, 31, v0")
    e(f"v_lshrrev_b32 v{vHh}, 5, v{vLane}")
    t0, t1, t2 = vE, vE + 1, vE + 2
    e(f"v_lshrrev_b32 v{t0}, 3, v{vLane}")
    e(f"v_and_b32 v{t0}, 3, v{t0}")
    e(f"v_lshl_add_u32 v{t0}, v{vHh}, 4, v{t0}")
    e(f"v_lshrrev_b32 v{t1}, 4, v{vLane}")
    e(f"v_and_b32 v{t2}, 7, v{vLane}")
    e(f"v_xor_b32 v{t1}, v{t1}, v{t2}")
    e(f"s_lshr_b32 s{sKh}, s{sW}, 2")
    e(f"s_lshr_b32 s{sWm}, s{sW}, 1")
    e(f"s_and_b32 s{sWm}, s{sWm}, 1")
    e(f"s_and_b32 s{sWn}, s{sW}, 1")
    e(f"s_lshl_b32 s{sT2}, s{sWm}, 1")
    e(f"s_add_u32 s{sT2}, s{sT2}, s{sKh}")
    e(f"s_lshl_b32 s{sT2}, s{sT2}, 1")
    for i in range(2):
        e(f"s_lshl_b32 s52, s{sW}, 1")
        e(f"s_add_u32 s52, s52, {i}")
        e("s_lshr_b32 s53, s52, 2")
        e("s_lshl_b32 s53, s53, 5")
        e("s_and_b32 s52, s52, 3")
        e("s_lshl_b32 s52, s52, 2")
        e("s_add_u32 s52, s52, s53")
        e(f"s_lshl_b32 s53, s{sC}, 7")
        e("s_add_u32 s52, s52, s53")
        e(f"v_add_u32 v{vDA+i}, s52, v{t0}")
        e(f"v_lshlrev_b32 v{vDA+i}, 11, v{vDA+i}")
        e(f"v_xor_b32 v{t2}, {4*i}, v{t1}")
        e(f"v_lshl_add_u32 v{vDA+i}, v{t2}, 4, v{vDA+i}")
        e(f"s_lshl_b32 s52, s{sG}, 6")
        e(f"s_lshl_b32 s53, s{sKh}, 5")
        e("s_add_u32 s52, s52, s53")
        e(f"s_lshl_b32 s53, s{sWn}, 4")
        e("s_add_u32 s52, s52, s53")
        e(f"s_add_u32 s52, s52, {8*i}")
        e(f"v_lshrrev_b32 v{vDB+i}, 3, v{vLane}")
        e(f"v_add_u32 v{vDB+i}, s52, v{vDB+i}")
        e(f"v_lshlrev_b32 v{vDB+i}, 11, v{vDB+i}")
        e(f"v_lshl_add_u32 v{vDB+i}, v{t2}, 4, v{vDB+i}")
    e(f"s_lshl_b32 s{sM0A}, s{sW}, 11")
    e(f"s_add_u32 s{sM0B}, s{sM0A}, 16384")
    e("s_waitcnt lgkmcnt(0)")
    stamp(0)
    srd(SX, 4, 2048 * 1024 * 2)
    e(f"s_cmp_eq_u32 s{sWm}, 0")
    e("s_cselect_b32 s52, s10, s12")
    e("s_cselect_b32 s53, s11, s13")
    srd(SB, 52, 1024 * 1024 * 2)
    def setk_imm(st):
        e(f"s_add_u32 s{sK}, s60, {st}")
        e(f"s_and_b32 s{sK}, s{sK}, 15")
        e(f"s_lshl_b32 s{sK}, s{sK}, 7")
    def dma(i4, slot_imm=None):
        base = sM0A if i4 < 2 else sM0B
        off = (i4 % 2) * 1024
        if slot_imm is not None:
            e(f"s_add_u32 m0, s{base}, {slot_imm*SLOT + off}")
        else:
            e(f"s_add_u32 s61, s{base}, s{sWr}")
            e(f"s_add_u32 m0, s61, {off}")
        e("s_nop 0")
        if i4 < 2:
            e(f"buffer_load_dwordx4 v{vDA+i4}, s[{SX}:{SX+3}], s{sK} offen lds")
        else:
            e(f"buffer_load_dwordx4 v{vDB+i4-2}, s[{SB}:{SB+3}], s{sK} offen lds")
    for st in range(PF):
        setk_imm(st)
        for i4 in range(4):
            dma(i4, st)
    srd(SH, 18, AGG + 131072 + (65536 if STAMP else 0))
    srd(SD, 16, 256)
    e(f"s_lshl_b32 s52, s{sC}, 4")
    e(f"s_add_u32 s52, s52, s{sG}")
    e("s_lshl_b32 s52, s52, 9")
    e(f"s_add_u32 s52, s52, {AGG}")
    e(f"s_lshl_b32 s53, s{sW}, 6")
    e("s_add_u32 s52, s52, s53")
    e(f"v_lshlrev_b32 v{t0}, 2, v{vLane}")
    e(f"v_add_u32 v{t0}, s52, v{t0}")
    e(f"v_mov_b32 v{t1}, -1")
    e("s_mov_b64 exec, 0xffff")
    e(f"buffer_store_dword v{t1}, v{t0}, s[{SH}:{SH+3}], 0 offen sc0 sc1")
    e("s_mov_b64 exec, -1")
    e(f"s_lshl_b32 s52, s{sG}, 6")
    e(f"s_lshl_b32 s53, s{sWn}, 5")
    e("s_add_u32 s53, s53, s52")
    e(f"v_add_u32 v{vT+12}, s53, v{vL31}")
    e(f"v_add_u32 v{vT2+12}, s52, v{vLane}")
    cp1 = lam_params(vT + 12, dict(l1r=vP, l1i=vP+1, l16r=vP+2, l16i=vP+3, s2r=vP+4, s2i=vP+5), vT, 6, 8, 14,
                     {"l1r", "l16r", "s2r"})
    cp2 = lam_params(vT2 + 12, dict(l16r=vQ, l16i=vQ+1, l128r=vQ+2, l128i=vQ+3), vT2, 6, 8, 14, {"l16r", "l128r"})
    e(f"v_lshrrev_b32 v{t0}, 1, v{vL31}")
    e(f"v_and_b32 v{t0}, 7, v{t0}")
    e(f"v_xor_b32 v{t0}, v{t0}, v{vHh}")
    e(f"s_lshl_b32 s52, s{sKh}, 2")
    for ks in range(2):
        e(f"s_add_u32 s53, s52, {2*ks}")
        e(f"v_xor_b32 v{t1}, s53, v{t0}")
        e(f"v_lshlrev_b32 v{t1}, 4, v{t1}")
        e(f"v_lshl_add_u32 v{t1}, v{vL31}, 7, v{t1}")
        e(f"s_lshl_b32 s53, s{sWm}, 13")
        e(f"v_add_u32 v{vRA+ks}, s53, v{t1}")
        e(f"s_lshl_b32 s53, s{sWn}, 13")
        e("s_add_u32 s53, s53, 16384")
        e(f"v_add_u32 v{vRB+ks}, s53, v{t1}")
    for i in range(64):
        e(f"v_mov_b32 v{vAcc+i}, 0")
    e("s_waitcnt vmcnt(0)")
    cp1(); cp2()
    def rd(va, vb, fb):
        r = []
        for mt in range(2):
            r.append(f"ds_read_b128 v[{fb+mt*4}:{fb+mt*4+3}], v{va} offset:{mt*4096}")
        for nt in range(2):
            r.append(f"ds_read_b128 v[{fb+8+nt*4}:{fb+8+nt*4+3}], v{vb} offset:{nt*4096}")
        return r
    def mf(fb):
        r = []
        for mt in range(2):
            for nt in range(2):
                a = vAcc + (mt * 2 + nt) * 16
                r.append(f"v_mfma_f32_32x32x16_bf16 v[{a}:{a+15}], v[{fb+mt*4}:{fb+mt*4+3}], v[{fb+8+nt*4}:{fb+8+nt*4+3}], v[{a}:{a+15}]")
        return r
    e("s_barrier")
    stamp(1)
    e(f"s_lshl_b32 s52, 1, s{sC}")
    e(f"v_mov_b32 v{t0}, s52")
    e(f"s_lshl_b32 s53, s{sG}, 2")
    e(f"v_mov_b32 v{t1}, s53")
    e(f"s_cmp_lg_u32 s{sW}, 0")
    e("s_cbranch_scc1 K1_noflag")
    e("s_mov_b64 exec, 1")
    e(f"buffer_atomic_or v{t0}, v{t1}, s[{SD}:{SD+3}], 0 offen sc1")
    e("s_mov_b64 exec, -1")
    e("K1_noflag:")
    for s in rd(vRA, vRB, vFA): e(s)
    e(f"s_mov_b32 s{sI}, 0")
    e(f"s_mov_b32 s{sRd}, 0")
    e(f"s_mov_b32 s{sRdN}, {SLOT}")
    e(f"s_mov_b32 s{sWr}, {PF*SLOT}")
    e("s_waitcnt lgkmcnt(0)")
    def book(nxt_pf):
        e(f"s_mov_b32 s{sWr}, s{sRd}")
        e(f"s_mov_b32 s{sRd}, s{sRdN}")
        e(f"s_add_u32 s{sRdN}, s{sRdN}, {SLOT}")
        e(f"s_cmp_ge_u32 s{sRdN}, {NS*SLOT}")
        e(f"s_cselect_b32 s{sRdN}, 0, s{sRdN}")
        e(f"s_add_u32 s{sI}, s{sI}, 1")
        e(f"v_add_u32 v{vA1}, s{sRd}, v{vRA+1}")
        e(f"v_add_u32 v{vB1}, s{sRd}, v{vRB+1}")
        e(f"v_add_u32 v{vA0}, s{sRdN}, v{vRA}")
        e(f"v_add_u32 v{vB0}, s{sRdN}, v{vRB}")
        if nxt_pf:
            e(f"s_add_u32 s{sK}, s{sK}, 128")
            e(f"s_and_b32 s{sK}, s{sK}, 2047")
    def body(with_dma, wait):
        rB = rd(vA1, vB1, vFB); mA = mf(vFA)
        e(mA[0]); e(rB[0]); e(rB[1])
        e(mA[1]); e(rB[2]); e(rB[3])
        if with_dma: dma(0)
        e(mA[2])
        if with_dma: dma(1)
        e(mA[3])
        for s_ in rd(vA0, vB0, vFA): e(s_)
        e("s_waitcnt lgkmcnt(4)")
        mB = mf(vFB)
        e(mB[0])
        if with_dma: dma(2)
        e(mB[1])
        if with_dma: dma(3)
        e(mB[2])
        book(with_dma)
        e(mB[3])
        e(wait)
    e(f"v_add_u32 v{vA1}, s{sRd}, v{vRA+1}")
    e(f"v_add_u32 v{vB1}, s{sRd}, v{vRB+1}")
    e(f"v_add_u32 v{vA0}, s{sRdN}, v{vRA}")
    e(f"v_add_u32 v{vB0}, s{sRdN}, v{vRB}")
    setk_imm(PF)
    e("K1_loop:")
    body(True, "s_waitcnt vmcnt(8) lgkmcnt(0)")
    e(f"s_cmp_lt_u32 s{sI}, {NST-PF}")
    e("s_barrier")
    e("s_cbranch_scc1 K1_loop")
    for wt in ("s_waitcnt vmcnt(4) lgkmcnt(0)", "s_waitcnt vmcnt(0) lgkmcnt(0)", "s_waitcnt lgkmcnt(0)", "s_waitcnt lgkmcnt(0)"):
        body(False, wt)
        e("s_barrier")
    stamp(2)
    EB = 0; HB = EB + 4096; XB = 8192; TB = 73728
    vXW = vE; vXR = vE + 1; vFl = vE + 2; vFa = vE + 3; vEr = vE + 4; vEi = vE + 5; vt0 = vE + 6; vt1 = vE + 7
    vES = vE + 8
    vHr = vE + 24; vHi = vE + 25; vE2 = vE + 26
    vAd = vE + 28
    e(f"s_lshl_b32 s53, s{sG}, 2")
    e(f"v_mov_b32 v{vFa}, s53")
    e(f"buffer_load_dword v{vFl}, v{vFa}, s[{SD}:{SD+3}], 0 offen sc0 sc1")
    e(f"v_lshlrev_b32 v{vXW}, 4, v{vLane}")
    e(f"s_lshl_b32 s52, s{sW}, 13")
    e(f"s_xor_b32 s53, s52, {4<<13}")
    e(f"s_add_u32 s52, s52, {XB}")
    e(f"s_add_u32 s53, s53, {XB}")
    e(f"v_add_u32 v{vXR}, s53, v{vXW}")
    e(f"v_add_u32 v{vXW}, s52, v{vXW}")
    e("s_nop 7")
    e(f"s_cmp_eq_u32 s{sKh}, 0")
    e("s_cbranch_scc0 K1_w1")
    for i in range(8):
        e(f"ds_write_b128 v{vXW}, v[{vAcc+32+i*4}:{vAcc+32+i*4+3}] offset:{i*1024}")
    e("s_branch K1_wd")
    e("K1_w1:")
    for i in range(8):
        e(f"ds_write_b128 v{vXW}, v[{vAcc+i*4}:{vAcc+i*4+3}] offset:{i*1024}")
    e("K1_wd:")
    e("s_waitcnt lgkmcnt(0)")
    e("s_barrier")
    for i in range(8):
        e(f"ds_read_b128 v[{vR+i*4}:{vR+i*4+3}], v{vXR} offset:{i*1024}")
    e("s_waitcnt lgkmcnt(0)")
    e(f"s_cmp_eq_u32 s{sKh}, 0")
    e("s_cbranch_scc0 K1_a1")
    for i in range(32):
        e(f"v_add_f32 v{vR+i}, v{vR+i}, v{vAcc+i}")
    e("s_branch K1_ad")
    e("K1_a1:")
    for i in range(32):
        e(f"v_add_f32 v{vR+i}, v{vR+i}, v{vAcc+32+i}")
    e("K1_ad:")
    lr, li = vP, vP + 1
    e(f"v_mov_b32 v{vEr}, v{vR}")
    e(f"v_mov_b32 v{vEi}, v{vR+16}")
    for q in range(1, 16):
        cmad(vEr, vEi, lr, li, vR + q, vR + 16 + q, vt0, vt1)
    e(f"v_add_u32 v{vAd}, s{sT2}, v{vHh}")
    e(f"v_lshlrev_b32 v{vAd}, 9, v{vAd}")
    e(f"v_lshl_add_u32 v{vAd}, v{vL31}, 3, v{vAd}")
    e(f"s_lshl_b32 s52, s{sWn}, 8")
    e(f"v_add_u32 v{vAd}, s52, v{vAd}")
    e(f"ds_write_b64 v{vAd}, v[{vEr}:{vEi}] offset:{EB}")
    e("s_waitcnt lgkmcnt(0)")
    e("s_barrier")
    stamp(3)
    e(f"s_cmp_lg_u32 s{sW}, 0")
    e("s_cbranch_scc1 K1_lbdone")
    e(f"v_lshlrev_b32 v{vAd}, 3, v{vLane}")
    for s in range(8):
        e(f"ds_read_b64 v[{vES+2*s}:{vES+2*s+1}], v{vAd} offset:{EB+s*512}")
    e("s_waitcnt lgkmcnt(0)")
    for s in range(1, 8):
        cmad(vES, vES + 1, vQ, vQ + 1, vES + 2 * s, vES + 2 * s + 1, vt0, vt1)
    e(f"s_lshl_b32 s52, s{sC}, 4")
    e(f"s_add_u32 s52, s52, s{sG}")
    e("s_lshl_b32 s52, s52, 9")
    e(f"s_add_u32 s52, s52, {AGG}")
    e(f"v_add_u32 v{vt0}, s52, v{vAd}")
    e(f"buffer_store_dwordx2 v[{vES}:{vES+1}], v{vt0}, s[{SH}:{SH+3}], 0 offen sc0 sc1")
    e(f"v_mov_b32 v{vHr}, 0")
    e(f"v_mov_b32 v{vHi}, 0")
    e(f"s_cmp_eq_u32 s{sC}, 0")
    e("s_cbranch_scc1 K1_nogather")
    e(f"s_lshl_b32 s52, 1, s{sC}")
    e("s_sub_u32 s52, s52, 1")
    e("s_mov_b32 s56, 0")
    e("s_waitcnt vmcnt(1)")
    e("K1_poll:")
    e(f"v_readfirstlane_b32 s53, v{vFl}")
    e("s_and_b32 s53, s53, s52")
    e("s_cmp_eq_u32 s53, s52")
    e("s_cbranch_scc1 K1_polldone")
    e(f"buffer_load_dword v{vFl}, v{vFa}, s[{SD}:{SD+3}], 0 offen sc0 sc1")
    e("s_add_u32 s56, s56, 1")
    e("s_waitcnt vmcnt(0)")
    e("s_cmp_lt_u32 s56, 0x200000")
    e("s_cbranch_scc1 K1_poll")
    e("K1_polldone:")
    e(f"s_lshl_b32 s52, s{sG}, 9")
    e(f"s_add_u32 s52, s52, {AGG}")
    e(f"v_add_u32 v{vFl}, s52, v{vAd}")
    e("s_mov_b32 s56, 0")
    e("K1_round:")
    for cp in range(15):
        e(f"s_mov_b32 s53, {cp*8192}")
        e(f"buffer_load_dwordx2 v[{vAcc+2*cp}:{vAcc+2*cp+1}], v{vFl}, s[{SH}:{SH+3}], s53 offen sc0 sc1")
    e("s_add_u32 s56, s56, 1")
    e("s_cmp_ge_u32 s56, 0x100000")
    e("s_waitcnt vmcnt(0)")
    e("s_cbranch_scc1 K1_allvalid")
    for cp in range(15):
        e(f"s_cmp_le_u32 s{sC}, {cp}")
        e("s_cbranch_scc1 K1_allvalid")
        e(f"v_cmp_eq_u32 vcc, -1, v{vAcc+2*cp}")
        e(f"v_cmp_eq_u32 s[54:55], -1, v{vAcc+2*cp+1}")
        e("s_or_b64 s[54:55], s[54:55], vcc")
        e("s_cbranch_scc1 K1_round")
    e("K1_allvalid:")
    for cp in range(15):
        e(f"s_cmp_le_u32 s{sC}, {cp}")
        e("s_cbranch_scc1 K1_nogather")
        cmad(vHr, vHi, vQ + 2, vQ + 3, vAcc + 2 * cp, vAcc + 2 * cp + 1, vt0, vt1)
    e("K1_nogather:")
    e(f"ds_write_b64 v{vAd}, v[{vHr}:{vHi}] offset:{HB}")
    e("s_waitcnt lgkmcnt(0)")
    e("K1_lbdone:")
    e("s_barrier")
    stamp(4)
    e(f"v_lshlrev_b32 v{vAd}, 3, v{vL31}")
    e(f"s_lshl_b32 s52, s{sWn}, 8")
    e(f"v_add_u32 v{vAd}, s52, v{vAd}")
    e(f"ds_read_b64 v[{vHr}:{vHi}], v{vAd} offset:{HB}")
    for s in range(6):
        e(f"ds_read_b64 v[{vES+2*s}:{vES+2*s+1}], v{vAd} offset:{EB+s*512}")
    e(f"s_lshl_b32 s52, s{sT2}, 9")
    e(f"v_add_u32 v{vt0}, s52, v{vAd}")
    e(f"ds_read_b64 v[{vE2}:{vE2+1}], v{vt0} offset:{EB}")
    e("s_waitcnt lgkmcnt(0)")
    for s in range(6):
        e(f"s_cmp_le_u32 s{sT2}, {s}")
        e("s_cbranch_scc1 K1_cdone")
        cmad(vHr, vHi, vP + 2, vP + 3, vES + 2 * s, vES + 2 * s + 1, vt0, vt1)
    e("K1_cdone:")
    e("s_mov_b32 s54, 0")
    e("s_mov_b32 s55, -1")
    e("s_mov_b64 exec, s[54:55]")
    cmad(vHr, vHi, vP + 2, vP + 3, vE2, vE2 + 1, vt0, vt1)
    e("s_mov_b64 exec, -1")
    s2r, s2i = vP + 4, vP + 5
    for q in range(16):
        cmad(vHr, vHi, lr, li, vR + q, vR + 16 + q, vt0, vt1)
        e(f"v_mul_f32 v{vAcc+q}, v{s2r}, v{vHr}")
        e(f"v_fma_f32 v{vAcc+q}, -v{s2i}, v{vHi}, v{vAcc+q}")
        e(f"v_mul_f32 v{vAcc+16+q}, -v{s2r}, v{vHi}")
        e(f"v_fma_f32 v{vAcc+16+q}, -v{s2i}, v{vHr}, v{vAcc+16+q}")
    vPk = vAcc + 32
    for p in range(16):
        e(f"v_cvt_pk_bf16_f32 v{vPk+p}, v{vAcc+2*p}, v{vAcc+2*p+1}")
    e(f"s_lshl_b32 s52, s{sW}, 12")
    e(f"s_add_u32 s52, s52, {TB}")
    e(f"v_lshlrev_b32 v{vAd}, 6, v{vL31}")
    e(f"v_lshl_add_u32 v{vAd}, v{vHh}, 5, v{vAd}")
    e(f"v_add_u32 v{vAd}, s52, v{vAd}")
    e(f"ds_write_b128 v{vAd}, v[{vPk}:{vPk+3}]")
    e(f"ds_write_b128 v{vAd}, v[{vPk+4}:{vPk+7}] offset:16")
    e(f"ds_write_b128 v{vAd}, v[{vPk+8}:{vPk+11}] offset:2048")
    e(f"ds_write_b128 v{vAd}, v[{vPk+12}:{vPk+15}] offset:2064")
    e(f"v_lshrrev_b32 v{vt0}, 4, v{vLane}")
    e(f"v_lshrrev_b32 v{vt1}, 2, v{vLane}")
    e(f"v_and_b32 v{vt1}, 3, v{vt1}")
    e(f"v_lshl_add_u32 v{vt1}, v{vt0}, 3, v{vt1}")
    e(f"v_lshlrev_b32 v{vt1}, 6, v{vt1}")
    e(f"v_and_b32 v{vAd}, 3, v{vLane}")
    e(f"v_lshl_add_u32 v{vt1}, v{vAd}, 3, v{vt1}")
    e(f"v_add_u32 v{vt1}, s52, v{vt1}")
    e(f"v_and_b32 v{vAd}, 15, v{vLane}")
    e(f"s_lshl_b32 s52, s{sC}, 7")
    e(f"s_lshl_b32 s53, s{sT2}, 4")
    e("s_add_u32 s52, s52, s53")
    e(f"v_add_u32 v{vAd}, s52, v{vAd}")
    e(f"v_lshlrev_b32 v{vAd}, 12, v{vAd}")
    e(f"v_lshl_add_u32 v{vAd}, v{vt0}, 4, v{vAd}")
    e(f"s_lshl_b32 s52, s{sG}, 7")
    e(f"s_lshl_b32 s53, s{sWn}, 6")
    e("s_add_u32 s52, s52, s53")
    e(f"v_add_u32 v{vAd}, s52, v{vAd}")
    e(f"v_add_u32 v{vt0}, {16*4096}, v{vAd}")
    e("s_waitcnt lgkmcnt(0)")
    vO = vR
    for part in range(2):
        for th in range(2):
            b = vO + (part * 2 + th) * 4
            for u in range(2):
                e(f"ds_read_b64_tr_b16 v[{b+2*u}:{b+2*u+1}], v{vt1} offset:{part*2048 + u*256 + th*32}")
    e("s_waitcnt lgkmcnt(0)")
    for part in range(2):
        for th in range(2):
            b = vO + (part * 2 + th) * 4
            e(f"buffer_store_dwordx4 v[{b}:{b+3}], v{vAd if th == 0 else vt0}, s[{SH}:{SH+3}], 0 offen offset:{part*2048}" + os.environ.get("HSC", ""))
    stamp(5)
    stamp_out(6, SH, sW, STB, vE)
    e("K1_done:")
    e("s_endpgm")

def gen_k2():
    NS = 6; SLOT = 24576; NST = 32; PF = NS - 1
    e(".globl s5_k2_kernel")
    e(".p2align 8")
    e(".type s5_k2_kernel,@function")
    e("s5_k2_kernel:")
    e("s_cmp_ge_u32 s2, 256")
    e("s_cbranch_scc1 K2_done")
    e("s_load_dwordx2 s[4:5], s[0:1], 0")
    e("s_load_dwordx4 s[8:11], s[0:1], 40")
    e("s_load_dwordx4 s[12:15], s[0:1], 64")
    e("s_load_dwordx2 s[16:17], s[0:1], 88")
    sTp, sDp, sW, sKh, sWt, sK, sKC, sM0A, sM0B = 44, 45, 46, 47, 48, 49, 59, 50, 51
    sI, sRd, sRdN, sWr = 36, 37, 38, 39
    SC, SH, SO = 20, 28, 32
    decode_wg(sTp, sDp)
    vLane = 1; vL31 = 2; vHh = 3
    vDA = 4; vDB = 5
    vRA = 8; vRB = 10
    vA0, vB0, vA1, vB1 = 12, 13, 14, 15
    vX = 20; vD = 28; vS = 36; vT = 52
    vFA = 64; vFB = 76
    vAcc = 96; vR = 128; vOA = 144
    t0, t1, t2 = vT, vT + 1, vT + 2
    e(f"v_and_b32 v{vLane}, 63, v0")
    e(f"v_lshrrev_b32 v{vT}, 6, v0")
    e("s_nop 0")
    e(f"v_readfirstlane_b32 s{sW}, v{vT}")
    e(f"v_and_b32 v{vL31}, 31, v0")
    e(f"v_lshrrev_b32 v{vHh}, 5, v{vLane}")
    e(f"v_lshrrev_b32 v{t0}, 3, v{vLane}")
    e(f"v_and_b32 v{t0}, 3, v{t0}")
    e(f"v_lshl_add_u32 v{t0}, v{vHh}, 4, v{t0}")
    e(f"v_lshrrev_b32 v{t1}, 4, v{vLane}")
    e(f"v_and_b32 v{t2}, 7, v{vLane}")
    e(f"v_xor_b32 v{t1}, v{t1}, v{t2}")
    e(f"s_lshr_b32 s{sKh}, s{sW}, 2")
    e(f"s_and_b32 s{sWt}, s{sW}, 3")
    e(f"s_lshl_b32 s52, s{sKh}, 5")
    e(f"s_lshl_b32 s53, s{sWt}, 2")
    e("s_add_u32 s52, s52, s53")
    e(f"s_lshl_b32 s53, s{sDp}, 6")
    e("s_add_u32 s52, s52, s53")
    e(f"v_add_u32 v{vDA}, s52, v{t0}")
    e(f"v_lshlrev_b32 v{vDA}, 11, v{vDA}")
    e(f"s_and_b32 s53, s{sW}, 1")
    e("s_lshl_b32 s53, s53, 2")
    e(f"v_xor_b32 v{t2}, s53, v{t1}")
    e(f"v_lshl_add_u32 v{vDA}, v{t2}, 4, v{vDA}")
    for i in range(2):
        e(f"s_lshl_b32 s52, s{sTp}, 7")
        e(f"s_lshl_b32 s53, s{sW}, 4")
        e("s_add_u32 s52, s52, s53")
        e(f"s_add_u32 s52, s52, {8*i}")
        e(f"v_lshrrev_b32 v{vDB+i}, 3, v{vLane}")
        e(f"v_add_u32 v{vDB+i}, s52, v{vDB+i}")
        e(f"v_lshlrev_b32 v{vDB+i}, 12, v{vDB+i}")
        e(f"v_xor_b32 v{t2}, {4*i}, v{t1}")
        e(f"v_lshl_add_u32 v{vDB+i}, v{t2}, 4, v{vDB+i}")
    e(f"s_lshl_b32 s{sM0A}, s{sW}, 10")
    e(f"s_lshl_b32 s{sM0B}, s{sW}, 11")
    e(f"s_add_u32 s{sM0B}, s{sM0B}, 8192")
    e("s_waitcnt lgkmcnt(0)")
    stamp(0)
    srd(SC, 8, 1024 * 1024 * 2)
    srd(SH, 16, AGG + (131072 + 65536 if STAMP else 0))
    def dma(i3, slot_imm=None):
        base = sM0A if i3 == 0 else sM0B
        off = 0 if i3 == 0 else (i3 - 1) * 1024
        if slot_imm is not None:
            e(f"s_add_u32 m0, s{base}, {slot_imm*SLOT + off}")
        else:
            e(f"s_add_u32 s61, s{base}, s{sWr}")
            e(f"s_add_u32 m0, s61, {off}")
        e("s_nop 0")
        if i3 == 0:
            e(f"buffer_load_dwordx4 v{vDA}, s[{SC}:{SC+3}], s{sKC} offen lds")
        else:
            e(f"buffer_load_dwordx4 v{vDB+i3-1}, s[{SH}:{SH+3}], s{sK} offen lds")
    for st in range(PF):
        e(f"s_add_u32 s{sKC}, s60, {st}")
        e(f"s_and_b32 s{sKC}, s{sKC}, 15")
        e(f"s_lshl_b32 s{sKC}, s{sKC}, 7")
        e(f"s_mov_b32 s{sK}, s{sKC}")
        for i3 in range(3):
            dma(i3, st)
    srd(SO, 14, 2048 * 1024 * 4)
    e(f"s_lshl_b32 s52, s{sTp}, 7")
    e(f"s_lshl_b32 s53, s{sWt}, 5")
    e("s_add_u32 s52, s52, s53")
    e(f"v_add_u32 v{t0}, s52, v{vL31}")
    e(f"s_lshl_b32 s52, s{sDp}, 6")
    e(f"s_lshl_b32 s53, s{sKh}, 5")
    e("s_add_u32 s52, s52, s53")
    e(f"v_lshlrev_b32 v{t1}, 4, v{vHh}")
    e(f"v_add_u32 v{t1}, s52, v{t1}")
    e(f"v_lshlrev_b32 v{t2}, 1, v{t1}")
    e(f"global_load_dwordx4 v[{vD}:{vD+3}], v{t2}, s[12:13]")
    e(f"global_load_dwordx4 v[{vD+4}:{vD+7}], v{t2}, s[12:13] offset:16")
    e(f"v_lshl_add_u32 v{t2}, v{t0}, 11, v{t2}")
    e(f"global_load_dwordx4 v[{vX}:{vX+3}], v{t2}, s[4:5]")
    e(f"global_load_dwordx4 v[{vX+4}:{vX+7}], v{t2}, s[4:5] offset:16")
    e(f"v_lshlrev_b32 v{vOA}, 2, v{t1}")
    e(f"v_lshl_add_u32 v{vOA}, v{t0}, 12, v{vOA}")
    e(f"v_lshrrev_b32 v{t0}, 1, v{vL31}")
    e(f"v_and_b32 v{t0}, 7, v{t0}")
    e(f"v_xor_b32 v{t0}, v{t0}, v{vHh}")
    e(f"s_lshl_b32 s52, s{sKh}, 2")
    for ks in range(2):
        e(f"s_add_u32 s53, s52, {2*ks}")
        e(f"v_xor_b32 v{t1}, s53, v{t0}")
        e(f"v_lshlrev_b32 v{t1}, 4, v{t1}")
        e(f"v_lshl_add_u32 v{vRA+ks}, v{vL31}, 7, v{t1}")
        e(f"s_lshl_b32 s53, s{sWt}, 12")
        e("s_add_u32 s53, s53, 8192")
        e(f"v_add_u32 v{vRB+ks}, s53, v{vRA+ks}")
    for i in range(32):
        e(f"v_mov_b32 v{vAcc+i}, 0")
    e("s_waitcnt vmcnt(0)")
    for p in range(8):
        e(f"v_lshlrev_b32 v{t0}, 16, v{vX+p}")
        e(f"v_and_b32 v{t1}, 0xffff0000, v{vX+p}")
        e(f"v_lshlrev_b32 v{t2}, 16, v{vD+p}")
        e(f"v_and_b32 v{t2+1}, 0xffff0000, v{vD+p}")
        e(f"v_mul_f32 v{t0}, v{t0}, v{t2}")
        e(f"v_mul_f32 v{t1}, v{t1}, v{t2+1}")
        e(f"v_cvt_pk_bf16_f32 v{t0}, v{t0}, v{t1}")
        e(f"v_lshlrev_b32 v{vS+2*p}, 16, v{t0}")
        e(f"v_and_b32 v{vS+2*p+1}, 0xffff0000, v{t0}")
    def rd(va, vb, fb):
        r = []
        for mt in range(2):
            r.append(f"ds_read_b128 v[{fb+mt*4}:{fb+mt*4+3}], v{va} offset:{mt*4096}")
        r.append(f"ds_read_b128 v[{fb+8}:{fb+11}], v{vb}")
        return r
    def mf(fb):
        r = []
        for mt in range(2):
            a = vAcc + mt * 16
            r.append(f"v_mfma_f32_32x32x16_bf16 v[{a}:{a+15}], v[{fb+mt*4}:{fb+mt*4+3}], v[{fb+8}:{fb+11}], v[{a}:{a+15}]")
        return r
    e("s_barrier")
    stamp(1)
    for s in rd(vRA, vRB, vFA): e(s)
    e(f"s_mov_b32 s{sI}, 0")
    e(f"s_mov_b32 s{sRd}, 0")
    e(f"s_mov_b32 s{sRdN}, {SLOT}")
    e(f"s_mov_b32 s{sWr}, {PF*SLOT}")
    e("s_waitcnt lgkmcnt(0)")
    def book(nxt_pf):
        e(f"s_mov_b32 s{sWr}, s{sRd}")
        e(f"s_mov_b32 s{sRd}, s{sRdN}")
        e(f"s_add_u32 s{sRdN}, s{sRdN}, {SLOT}")
        e(f"s_cmp_ge_u32 s{sRdN}, {NS*SLOT}")
        e(f"s_cselect_b32 s{sRdN}, 0, s{sRdN}")
        e(f"s_add_u32 s{sI}, s{sI}, 1")
        e(f"v_add_u32 v{vA1}, s{sRd}, v{vRA+1}")
        e(f"v_add_u32 v{vB1}, s{sRd}, v{vRB+1}")
        e(f"v_add_u32 v{vA0}, s{sRdN}, v{vRA}")
        e(f"v_add_u32 v{vB0}, s{sRdN}, v{vRB}")
        if nxt_pf:
            e(f"s_add_u32 s{sKC}, s{sKC}, 128")
            e(f"s_and_b32 s{sKC}, s{sKC}, 2047")
            e(f"s_cmp_ge_u32 s{sI}, {16-PF}")
            e(f"s_cselect_b32 s{SC}, s10, s8")
            e(f"s_cselect_b32 s53, s11, s9")
            e(f"s_cselect_b32 s{sK}, 2048, 0")
            e(f"s_and_b32 s{SC+1}, s53, 0xffff")
            e(f"s_add_u32 s{sK}, s{sK}, s{sKC}")
    def body(with_dma, wait):
        rB = rd(vA1, vB1, vFB); mA = mf(vFA)
        e(mA[0])
        for s_ in rB: e(s_)
        if with_dma: dma(0)
        e(mA[1])
        for s_ in rd(vA0, vB0, vFA): e(s_)
        if with_dma: dma(1)
        e("s_waitcnt lgkmcnt(3)")
        mB = mf(vFB)
        e(mB[0])
        if with_dma: dma(2)
        book(with_dma)
        e(mB[1])
        e(wait)
    e(f"v_add_u32 v{vA1}, s{sRd}, v{vRA+1}")
    e(f"v_add_u32 v{vB1}, s{sRd}, v{vRB+1}")
    e(f"v_add_u32 v{vA0}, s{sRdN}, v{vRA}")
    e(f"v_add_u32 v{vB0}, s{sRdN}, v{vRB}")
    e(f"s_add_u32 s{sKC}, s60, {PF}")
    e(f"s_and_b32 s{sKC}, s{sKC}, 15")
    e(f"s_lshl_b32 s{sKC}, s{sKC}, 7")
    e(f"s_mov_b32 s{sK}, s{sKC}")
    e("K2_loop:")
    body(True, f"s_waitcnt vmcnt({3*(PF-2)}) lgkmcnt(0)")
    e(f"s_cmp_lt_u32 s{sI}, {NST-PF}")
    e("s_barrier")
    e("s_cbranch_scc1 K2_loop")
    for j in range(PF):
        n = 3 * (PF - 3 - j)
        body(False, f"s_waitcnt vmcnt({n}) lgkmcnt(0)" if n >= 0 else "s_waitcnt lgkmcnt(0)")
        e("s_barrier")
    stamp(2)
    vXW, vXR = vT, vT + 1
    e(f"v_lshlrev_b32 v{vXW}, 4, v{vLane}")
    e(f"s_lshl_b32 s52, s{sW}, 12")
    e(f"s_xor_b32 s53, s52, {4<<12}")
    e(f"v_add_u32 v{vXR}, s53, v{vXW}")
    e(f"v_add_u32 v{vXW}, s52, v{vXW}")
    e("s_nop 7")
    e("s_nop 3")
    e(f"s_cmp_eq_u32 s{sKh}, 0")
    e("s_cbranch_scc0 K2_w1")
    for i in range(4):
        e(f"ds_write_b128 v{vXW}, v[{vAcc+16+i*4}:{vAcc+16+i*4+3}] offset:{i*1024}")
    for i in range(16):
        e(f"v_add_f32 v{vS+i}, v{vS+i}, v{vAcc+i}")
    e("s_branch K2_wd")
    e("K2_w1:")
    for i in range(4):
        e(f"ds_write_b128 v{vXW}, v[{vAcc+i*4}:{vAcc+i*4+3}] offset:{i*1024}")
    for i in range(16):
        e(f"v_add_f32 v{vS+i}, v{vS+i}, v{vAcc+16+i}")
    e("K2_wd:")
    e("s_waitcnt lgkmcnt(0)")
    e("s_barrier")
    for i in range(4):
        e(f"ds_read_b128 v[{vR+i*4}:{vR+i*4+3}], v{vXR} offset:{i*1024}")
    e("s_waitcnt lgkmcnt(0)")
    for i in range(16):
        e(f"v_add_f32 v{vR+i}, v{vR+i}, v{vS+i}")
    for i in range(4):
        e(f"buffer_store_dwordx4 v[{vR+i*4}:{vR+i*4+3}], v{vOA}, s[{SO}:{SO+3}], 0 offen offset:{i*16}")
    stamp(3)
    stamp_out(4, SH, sW, STB + 32768, vT)
    if STAMP:
        e("s_cmp_lg_u32 s2, 100")
        e("s_cbranch_scc1 K2_done")
        e(f"s_cmp_lg_u32 s{sW}, 0")
        e("s_cbranch_scc1 K2_done")
        e("s_load_dwordx2 s[52:53], s[0:1], 80")
        e("s_waitcnt vmcnt(0) lgkmcnt(0)")
        srd(56, 52, 256)
        e("s_mov_b64 exec, 0xffff")
        e(f"v_lshlrev_b32 v{vT}, 2, v{vLane}")
        b1 = STB + 100*64; b2 = STB + 32768 + 100*64
        for mask, base in ((0x3f, b1), (0x3c0, b2 - 24), (0xc00, b1 + 32 - 36), (0x3000, b2 + 32 - 44)):
            e(f"s_mov_b64 exec, {mask:#x}")
            e(f"v_add_u32 v{vT+1}, {base}, v{vT}")
        e("s_mov_b64 exec, 0x3fff")
        e(f"buffer_load_dword v{vT+2}, v{vT+1}, s[{SH}:{SH+3}], 0 offen sc0 sc1")
        e("s_waitcnt vmcnt(0)")
        e(f"buffer_store_dword v{vT+2}, v{vT}, s[56:59], 0 offen")
    e("K2_done:")
    e("s_endpgm")

def desc(name, vg):
    return f""".amdhsa_kernel {name}
  .amdhsa_next_free_vgpr {vg}
  .amdhsa_next_free_sgpr 96
  .amdhsa_accum_offset {vg}
  .amdhsa_group_segment_fixed_size 0
  .amdhsa_kernarg_size 96
  .amdhsa_user_sgpr_count 2
  .amdhsa_user_sgpr_kernarg_segment_ptr 1
  .amdhsa_system_sgpr_workgroup_id_x 1
  .amdhsa_float_denorm_mode_32 3
.end_amdhsa_kernel
"""

gen_k1()
gen_k2()
out = HDR + "\n".join(L) + "\n.section .rodata,\"a\"\n.p2align 6\n" + desc("s5_k1_kernel", 232) + ".p2align 6\n" + desc("s5_k2_kernel", 152)
path = sys.argv[1] if len(sys.argv) > 1 else "standalone__ssm_conv_s5__prompt.s"
open(path, "w").write(out)
print("wrote", path, len(out), "bytes")
```

```python
import sys, os, struct

L = []
STAMP = os.environ.get("STAMP", "0") == "1"
ROT = int(os.environ.get("ROT", "15"))
def e(s=""):
    L.append("    " + s if s and not s.endswith(":") and not s.startswith(".") and not s.startswith(";") else s)

LOG2E = 0x3fb8aa3b
INV2PI = 0x3e22f983
AGG = 8 * 1024 * 1024
HFL = AGG + 131072
STB = HFL + 8192
KN = "standalone__ssm_conv_s5__prompt_kernel"

HDR = """; Kernarg layout (96 bytes): x, Lambda_re, Lambda_im, B_re, B_im, C_re, C_im, log_dt, Dskip, out, debug, ws
; @launch grid=(256,1,1) block=(512,1,1) lds=163840
.amdgcn_target "amdgcn-amd-amdhsa--gfx950"
.text
"""

def srd(d, base, size):
    e(f"s_mov_b32 s{d}, s{base}")
    e(f"s_and_b32 s{d+1}, s{base+1}, 0xffff")
    e(f"s_mov_b32 s{d+2}, {size}")
    e(f"s_mov_b32 s{d+3}, 0x00020000")

def stamp(n):
    if STAMP:
        e(f"s_memrealtime s[62:63]")
        e("s_waitcnt lgkmcnt(0)")
        e(f"s_mov_b32 s{70+n}, s62")

def lam_params(vch, out, tmp, sLre, sLim, sLdt, want):
    e(f"v_lshlrev_b32 v{tmp+3}, 1, v{vch}")
    e(f"global_load_ushort v{tmp}, v{tmp+3}, s[{sLre}:{sLre+1}]")
    e(f"global_load_ushort v{tmp+1}, v{tmp+3}, s[{sLim}:{sLim+1}]")
    e(f"global_load_ushort v{tmp+2}, v{tmp+3}, s[{sLdt}:{sLdt+1}]")
    def compute():
        lre, lim, ldt = tmp, tmp + 1, tmp + 2
        a, b, c, d, f, g = tmp + 3, tmp + 4, tmp + 5, tmp + 6, tmp + 7, tmp + 8
        e(f"v_lshlrev_b32 v{lre}, 16, v{lre}")
        e(f"v_lshlrev_b32 v{lim}, 16, v{lim}")
        e(f"v_lshlrev_b32 v{ldt}, 16, v{ldt}")
        e(f"v_mul_f32 v{a}, {LOG2E:#x}, v{ldt}")
        e(f"v_exp_f32 v{a}, v{a}")
        e("s_nop 0")
        e(f"v_cvt_pk_bf16_f32 v{a}, v{a}, v{a}")
        e(f"v_lshlrev_b32 v{a}, 16, v{a}")
        e(f"v_mul_f32 v{b}, v{a}, v{lre}")
        e(f"v_mul_f32 v{c}, v{a}, v{lim}")
        e(f"v_mul_f32 v{b}, {LOG2E:#x}, v{b}")
        e(f"v_mul_f32 v{c}, {INV2PI:#x}, v{c}")
        for nm, n in (("l1", 1.0), ("l16", 16.0), ("l128", 128.0)):
            if nm + "r" not in want and not (nm == "l1" and "s2r" in want):
                continue
            rr = out.get(nm + "r", tmp + 9); ii = out.get(nm + "i", tmp + 10)
            nb = struct.unpack("<I", struct.pack("<f", n))[0]
            e(f"v_mul_f32 v{d}, {nb:#x}, v{b}")
            e(f"v_mul_f32 v{f}, {nb:#x}, v{c}")
            e(f"v_exp_f32 v{d}, v{d}")
            e(f"v_fract_f32 v{f}, v{f}")
            e(f"v_cos_f32 v{g}, v{f}")
            e(f"v_sin_f32 v{f}, v{f}")
            e("s_nop 0")
            e(f"v_mul_f32 v{rr}, v{d}, v{g}")
            e(f"v_mul_f32 v{ii}, v{d}, v{f}")
            if nm == "l1" and "s2r" in want:
                e(f"v_add_f32 v{d}, -1.0, v{rr}")
                e(f"v_mul_f32 v{f}, v{lre}, v{lre}")
                e(f"v_fma_f32 v{f}, v{lim}, v{lim}, v{f}")
                e(f"v_rcp_f32 v{f}, v{f}")
                e(f"v_mul_f32 v{g}, v{d}, v{lre}")
                e(f"v_fma_f32 v{g}, v{ii}, v{lim}, v{g}")
                e(f"v_mul_f32 v{a}, v{ii}, v{lre}")
                e(f"v_fma_f32 v{a}, -v{d}, v{lim}, v{a}")
                e(f"v_add_f32 v{f}, v{f}, v{f}")
                e(f"v_mul_f32 v{out['s2r']}, v{g}, v{f}")
                e(f"v_mul_f32 v{out['s2i']}, v{a}, v{f}")
    return compute

def cmad(hr, hi, lr, li, br, bi, t0, t1):
    e(f"v_fma_f32 v{t0}, v{lr}, v{hr}, v{br}")
    e(f"v_fma_f32 v{t1}, v{lr}, v{hi}, v{bi}")
    e(f"v_fma_f32 v{t0}, -v{li}, v{hi}, v{t0}")
    e(f"v_fma_f32 v{hi}, v{li}, v{hr}, v{t1}")
    e(f"v_mov_b32 v{hr}, v{t0}")

def gen():
    e(f".globl {KN}")
    e(".p2align 8")
    e(f".type {KN},@function")
    e(f"{KN}:")
    e("s_cmp_ge_u32 s2, 256")
    e("s_cbranch_scc1 KF_done")
    e("s_load_dwordx4 s[4:7], s[0:1], 0")
    e("s_load_dwordx4 s[8:11], s[0:1], 16")
    e("s_load_dwordx2 s[12:13], s[0:1], 32")
    e("s_load_dwordx2 s[14:15], s[0:1], 56")
    e("s_load_dwordx4 s[16:19], s[0:1], 80")
    e("s_load_dwordx4 s[84:87], s[0:1], 40")
    e("s_load_dwordx4 s[88:91], s[0:1], 64")
    NS = 5; SLOT = 32768; NST = 16; PF = 4
    sC, sG, sW, sKh, sWm, sWn, sT2, sK, sM0A, sM0B = 40, 41, 42, 43, 44, 45, 46, 47, 48, 49
    sI, sRd, sRdN, sWr = 36, 37, 38, 39
    sHF = 58
    SX, SB, SH, SD = 20, 24, 28, 32
    e("s_and_b32 s3, s2, 7")
    e("s_lshr_b32 s60, s2, 3")
    e("s_lshr_b32 s52, s3, 1")
    e("s_lshl_b32 s52, s52, 2")
    e("s_lshr_b32 s53, s60, 3")
    e(f"s_add_u32 s{sC}, s52, s53")
    e("s_and_b32 s52, s3, 1")
    e("s_lshl_b32 s52, s52, 3")
    e("s_and_b32 s53, s60, 7")
    e(f"s_add_u32 s{sG}, s52, s53")
    e(f"s_and_b32 s60, s60, {ROT}")
    vLane = 1; vL31 = 2; vHh = 3
    vDA = 4; vDB = 6
    vRA = 8; vRB = 10
    vA0, vB0, vA1, vB1 = 12, 13, 14, 15
    vP = 20; vQ = 26
    vT = 30; vT2 = 48
    vFA = 64; vFB = 80
    vAcc = 96
    vR = 160
    vE = 192
    e(f"v_and_b32 v{vLane}, 63, v0")
    e(f"v_lshrrev_b32 v{vT}, 6, v0")
    e("s_nop 0")
    e(f"v_readfirstlane_b32 s{sW}, v{vT}")
    e(f"v_and_b32 v{vL31}, 31, v0")
    e(f"v_lshrrev_b32 v{vHh}, 5, v{vLane}")
    t0, t1, t2 = vE, vE + 1, vE + 2
    e(f"v_lshrrev_b32 v{t0}, 3, v{vLane}")
    e(f"v_and_b32 v{t0}, 3, v{t0}")
    e(f"v_lshl_add_u32 v{t0}, v{vHh}, 4, v{t0}")
    e(f"v_lshrrev_b32 v{t1}, 4, v{vLane}")
    e(f"v_and_b32 v{t2}, 7, v{vLane}")
    e(f"v_xor_b32 v{t1}, v{t1}, v{t2}")
    e(f"s_lshr_b32 s{sKh}, s{sW}, 2")
    e(f"s_lshr_b32 s{sWm}, s{sW}, 1")
    e(f"s_and_b32 s{sWm}, s{sWm}, 1")
    e(f"s_and_b32 s{sWn}, s{sW}, 1")
    e(f"s_lshl_b32 s{sT2}, s{sWm}, 1")
    e(f"s_add_u32 s{sT2}, s{sT2}, s{sKh}")
    e(f"s_lshl_b32 s{sT2}, s{sT2}, 1")
    for i in range(2):
        e(f"s_lshl_b32 s52, s{sW}, 1")
        e(f"s_add_u32 s52, s52, {i}")
        e("s_lshr_b32 s53, s52, 2")
        e("s_lshl_b32 s53, s53, 5")
        e("s_and_b32 s52, s52, 3")
        e("s_lshl_b32 s52, s52, 2")
        e("s_add_u32 s52, s52, s53")
        e(f"s_lshl_b32 s53, s{sC}, 7")
        e("s_add_u32 s52, s52, s53")
        e(f"v_add_u32 v{vDA+i}, s52, v{t0}")
        e(f"v_lshlrev_b32 v{vDA+i}, 11, v{vDA+i}")
        e(f"v_xor_b32 v{t2}, {4*i}, v{t1}")
        e(f"v_lshl_add_u32 v{vDA+i}, v{t2}, 4, v{vDA+i}")
        e(f"s_lshl_b32 s52, s{sG}, 6")
        e(f"s_lshl_b32 s53, s{sKh}, 5")
        e("s_add_u32 s52, s52, s53")
        e(f"s_lshl_b32 s53, s{sWn}, 4")
        e("s_add_u32 s52, s52, s53")
        e(f"s_add_u32 s52, s52, {8*i}")
        e(f"v_lshrrev_b32 v{vDB+i}, 3, v{vLane}")
        e(f"v_add_u32 v{vDB+i}, s52, v{vDB+i}")
        e(f"v_lshlrev_b32 v{vDB+i}, 11, v{vDB+i}")
        e(f"v_lshl_add_u32 v{vDB+i}, v{t2}, 4, v{vDB+i}")
    e(f"s_lshl_b32 s{sM0A}, s{sW}, 11")
    e(f"s_add_u32 s{sM0B}, s{sM0A}, 16384")
    e("s_waitcnt lgkmcnt(0)")
    stamp(0)
    srd(SX, 4, 2048 * 1024 * 2)
    e(f"s_cmp_eq_u32 s{sWm}, 0")
    e("s_cselect_b32 s52, s10, s12")
    e("s_cselect_b32 s53, s11, s13")
    srd(SB, 52, 1024 * 1024 * 2)
    def setk_imm(st):
        e(f"s_add_u32 s{sK}, s60, {st}")
        e(f"s_and_b32 s{sK}, s{sK}, 15")
        e(f"s_lshl_b32 s{sK}, s{sK}, 7")
    def dma(i4, slot_imm=None):
        base = sM0A if i4 < 2 else sM0B
        off = (i4 % 2) * 1024
        if slot_imm is not None:
            e(f"s_add_u32 m0, s{base}, {slot_imm*SLOT + off}")
        else:
            e(f"s_add_u32 s61, s{base}, s{sWr}")
            e(f"s_add_u32 m0, s61, {off}")
        e("s_nop 0")
        if i4 < 2:
            e(f"buffer_load_dwordx4 v{vDA+i4}, s[{SX}:{SX+3}], s{sK} offen lds")
        else:
            e(f"buffer_load_dwordx4 v{vDB+i4-2}, s[{SB}:{SB+3}], s{sK} offen lds")
    for st in range(PF):
        setk_imm(st)
        for i4 in range(4):
            dma(i4, st)
    srd(SH, 18, STB + (65536 if STAMP else 0))
    srd(SD, 16, 256)
    e(f"s_lshl_b32 s52, s{sG}, 6")
    e(f"s_lshl_b32 s53, s{sWn}, 5")
    e("s_add_u32 s53, s53, s52")
    e(f"v_add_u32 v{vT+12}, s53, v{vL31}")
    e(f"v_add_u32 v{vT2+12}, s52, v{vLane}")
    cp1 = lam_params(vT + 12, dict(l1r=vP, l1i=vP+1, l16r=vP+2, l16i=vP+3, s2r=vP+4, s2i=vP+5), vT, 6, 8, 14,
                     {"l1r", "l16r", "s2r"})
    cp2 = lam_params(vT2 + 12, dict(l16r=vQ, l16i=vQ+1, l128r=vQ+2, l128i=vQ+3), vT2, 6, 8, 14, {"l16r", "l128r"})
    e(f"s_lshl_b32 s52, s{sC}, 4")
    e(f"s_add_u32 s54, s52, s{sG}")
    e("s_lshl_b32 s52, s54, 9")
    e(f"s_add_u32 s52, s52, {AGG}")
    e(f"s_lshl_b32 s53, s{sW}, 6")
    e("s_add_u32 s52, s52, s53")
    e(f"v_lshlrev_b32 v{vE+3}, 2, v{vLane}")
    e(f"v_add_u32 v{vE+3}, s52, v{vE+3}")
    e(f"v_mov_b32 v{vE+4}, -1")
    e("s_lshl_b32 s52, s54, 3")
    e(f"s_add_u32 s52, s52, s{sW}")
    e("s_lshl_b32 s52, s52, 2")
    e(f"s_add_u32 s{sHF}, s52, {HFL}")
    e("s_mov_b64 exec, 0x10000")
    e(f"v_mov_b32 v{vE+3}, s{sHF}")
    e("s_mov_b64 exec, 0x1ffff")
    e(f"buffer_store_dword v{vE+4}, v{vE+3}, s[{SH}:{SH+3}], 0 offen sc1")
    e("s_mov_b64 exec, -1")
    e(f"v_lshrrev_b32 v{t0}, 1, v{vL31}")
    e(f"v_and_b32 v{t0}, 7, v{t0}")
    e(f"v_xor_b32 v{t0}, v{t0}, v{vHh}")
    e(f"s_lshl_b32 s52, s{sKh}, 2")
    for ks in range(2):
        e(f"s_add_u32 s53, s52, {2*ks}")
        e(f"v_xor_b32 v{t1}, s53, v{t0}")
        e(f"v_lshlrev_b32 v{t1}, 4, v{t1}")
        e(f"v_lshl_add_u32 v{t1}, v{vL31}, 7, v{t1}")
        e(f"s_lshl_b32 s53, s{sWm}, 13")
        e(f"v_add_u32 v{vRA+ks}, s53, v{t1}")
        e(f"s_lshl_b32 s53, s{sWn}, 13")
        e("s_add_u32 s53, s53, 16384")
        e(f"v_add_u32 v{vRB+ks}, s53, v{t1}")
    for i in range(64):
        e(f"v_mov_b32 v{vAcc+i}, 0")
    e("s_waitcnt vmcnt(1)")
    cp1(); cp2()
    def rd(va, vb, fb):
        r = []
        for mt in range(2):
            r.append(f"ds_read_b128 v[{fb+mt*4}:{fb+mt*4+3}], v{va} offset:{mt*4096}")
        for nt in range(2):
            r.append(f"ds_read_b128 v[{fb+8+nt*4}:{fb+8+nt*4+3}], v{vb} offset:{nt*4096}")
        return r
    def mf(fb):
        r = []
        for mt in range(2):
            for nt in range(2):
                a = vAcc + (mt * 2 + nt) * 16
                r.append(f"v_mfma_f32_32x32x16_bf16 v[{a}:{a+15}], v[{fb+mt*4}:{fb+mt*4+3}], v[{fb+8+nt*4}:{fb+8+nt*4+3}], v[{a}:{a+15}]")
        return r
    e("s_barrier")
    stamp(1)
    for s_ in rd(vRA, vRB, vFA): e(s_)
    e(f"s_mov_b32 s{sI}, 0")
    e(f"s_mov_b32 s{sRd}, 0")
    e(f"s_mov_b32 s{sRdN}, {SLOT}")
    e(f"s_mov_b32 s{sWr}, {PF*SLOT}")
    def book(nxt_pf):
        e(f"s_mov_b32 s{sWr}, s{sRd}")
        e(f"s_mov_b32 s{sRd}, s{sRdN}")
        e(f"s_add_u32 s{sRdN}, s{sRdN}, {SLOT}")
        e(f"s_cmp_ge_u32 s{sRdN}, {NS*SLOT}")
        e(f"s_cselect_b32 s{sRdN}, 0, s{sRdN}")
        e(f"s_add_u32 s{sI}, s{sI}, 1")
        e(f"v_add_u32 v{vA1}, s{sRd}, v{vRA+1}")
        e(f"v_add_u32 v{vB1}, s{sRd}, v{vRB+1}")
        e(f"v_add_u32 v{vA0}, s{sRdN}, v{vRA}")
        e(f"v_add_u32 v{vB0}, s{sRdN}, v{vRB}")
        if nxt_pf:
            e(f"s_add_u32 s{sK}, s{sK}, 128")
            e(f"s_and_b32 s{sK}, s{sK}, 2047")
    def body(with_dma, wait):
        rB = rd(vA1, vB1, vFB); mA = mf(vFA)
        e(mA[0]); e(rB[0]); e(rB[1])
        e(mA[1]); e(rB[2]); e(rB[3])
        if with_dma: dma(0)
        e(mA[2])
        if with_dma: dma(1)
        e(mA[3])
        for s_ in rd(vA0, vB0, vFA): e(s_)
        e("s_waitcnt lgkmcnt(4)")
        mB = mf(vFB)
        e(mB[0])
        if with_dma: dma(2)
        e(mB[1])
        if with_dma: dma(3)
        e(mB[2])
        book(with_dma)
        e(mB[3])
        e(wait)
    e(f"v_add_u32 v{vA1}, s{sRd}, v{vRA+1}")
    e(f"v_add_u32 v{vB1}, s{sRd}, v{vRB+1}")
    e(f"v_add_u32 v{vA0}, s{sRdN}, v{vRA}")
    e(f"v_add_u32 v{vB0}, s{sRdN}, v{vRB}")
    setk_imm(PF)
    e("s_waitcnt lgkmcnt(0)")
    for _ in range(2):
        body(True, "s_waitcnt vmcnt(8) lgkmcnt(0)")
        e("s_barrier")
    e(f"s_lshl_b32 s52, 1, s{sC}")
    e(f"v_mov_b32 v{t0}, s52")
    e(f"s_lshl_b32 s53, s{sG}, 2")
    e(f"v_mov_b32 v{t1}, s53")
    e(f"s_cmp_lg_u32 s{sW}, 0")
    e("s_cbranch_scc1 K1_noflag")
    e("s_mov_b64 exec, 1")
    e(f"buffer_atomic_or v{t0}, v{t1}, s[{SD}:{SD+3}], 0 offen sc1")
    e("s_mov_b64 exec, -1")
    e("K1_noflag:")
    e("K1_loop:")
    body(True, "s_waitcnt vmcnt(8) lgkmcnt(0)")
    e(f"s_cmp_lt_u32 s{sI}, {NST-PF}")
    e("s_barrier")
    e("s_cbranch_scc1 K1_loop")
    def warmup():
        e(f"s_cmp_lt_u32 s{sW}, 4")
        e("s_cselect_b32 s54, s84, s86")
        e("s_cselect_b32 s55, s85, s87")
        e(f"s_and_b32 s52, s{sC}, 3")
        e("s_lshl_b32 s52, s52, 4")
        e(f"s_and_b32 s53, s{sW}, 3")
        e("s_lshl_b32 s53, s53, 2")
        e("s_add_u32 s52, s52, s53")
        e(f"s_lshl_b32 s53, s{sG}, 6")
        e("s_add_u32 s52, s52, s53")
        e(f"v_lshrrev_b32 v{t0}, 4, v{vLane}")
        e(f"v_add_u32 v{t0}, s52, v{t0}")
        e(f"v_lshlrev_b32 v{t0}, 11, v{t0}")
        e(f"v_and_b32 v{t1}, 15, v{vLane}")
        e(f"v_lshl_add_u32 v{t0}, v{t1}, 7, v{t0}")
        if os.environ.get("WARM", "1") == "1":
            e(f"global_load_dword v{vE+30}, v{t0}, s[54:55]")
    for wi, wt in enumerate(("s_waitcnt vmcnt(4) lgkmcnt(0)", "s_waitcnt vmcnt(0) lgkmcnt(0)", "s_waitcnt lgkmcnt(0)", "s_waitcnt lgkmcnt(0)")):
        if wi == 2: warmup()
        body(False, wt)
        e("s_barrier")
    stamp(2)
    EB = 0; HB = EB + 4096; XB = 8192; TB = 73728
    vXW = vE; vXR = vE + 1; vFl = vE + 2; vFa = vE + 3; vEr = vE + 4; vEi = vE + 5; vt0 = vE + 6; vt1 = vE + 7
    vES = vE + 8
    vHr = vE + 24; vHi = vE + 25; vE2 = vE + 26
    vAd = vE + 28
    e(f"v_and_b32 v{vFa}, 15, v{vLane}")
    e(f"v_lshlrev_b32 v{vFa}, 2, v{vFa}")
    e(f"buffer_load_dword v{vFl}, v{vFa}, s[{SD}:{SD+3}], 0 offen sc1")
    e(f"v_lshlrev_b32 v{vXW}, 4, v{vLane}")
    e(f"s_lshl_b32 s52, s{sW}, 13")
    e(f"s_xor_b32 s53, s52, {4<<13}")
    e(f"s_add_u32 s52, s52, {XB}")
    e(f"s_add_u32 s53, s53, {XB}")
    e(f"v_add_u32 v{vXR}, s53, v{vXW}")
    e(f"v_add_u32 v{vXW}, s52, v{vXW}")
    e("s_nop 7")
    e(f"s_cmp_eq_u32 s{sKh}, 0")
    e("s_cbranch_scc0 K1_w1")
    for i in range(8):
        e(f"ds_write_b128 v{vXW}, v[{vAcc+32+i*4}:{vAcc+32+i*4+3}] offset:{i*1024}")
    e("s_branch K1_wd")
    e("K1_w1:")
    for i in range(8):
        e(f"ds_write_b128 v{vXW}, v[{vAcc+i*4}:{vAcc+i*4+3}] offset:{i*1024}")
    e("K1_wd:")
    e("s_waitcnt lgkmcnt(0)")
    e("s_barrier")
    for i in range(8):
        e(f"ds_read_b128 v[{vR+i*4}:{vR+i*4+3}], v{vXR} offset:{i*1024}")
    e("s_waitcnt lgkmcnt(0)")
    e(f"s_cmp_eq_u32 s{sKh}, 0")
    e("s_cbranch_scc0 K1_a1")
    for i in range(32):
        e(f"v_add_f32 v{vR+i}, v{vR+i}, v{vAcc+i}")
    e("s_branch K1_ad")
    e("K1_a1:")
    for i in range(32):
        e(f"v_add_f32 v{vR+i}, v{vR+i}, v{vAcc+32+i}")
    e("K1_ad:")
    lr, li = vP, vP + 1
    e(f"v_mov_b32 v{vEr}, v{vR}")
    e(f"v_mov_b32 v{vEi}, v{vR+16}")
    for q in range(1, 16):
        cmad(vEr, vEi, lr, li, vR + q, vR + 16 + q, vt0, vt1)
    e(f"v_add_u32 v{vAd}, s{sT2}, v{vHh}")
    e(f"v_lshlrev_b32 v{vAd}, 9, v{vAd}")
    e(f"v_lshl_add_u32 v{vAd}, v{vL31}, 3, v{vAd}")
    e(f"s_lshl_b32 s52, s{sWn}, 8")
    e(f"v_add_u32 v{vAd}, s52, v{vAd}")
    e(f"ds_write_b64 v{vAd}, v[{vEr}:{vEi}] offset:{EB}")
    e("s_waitcnt lgkmcnt(0)")
    e("s_barrier")
    stamp(3)
    e(f"s_cmp_lg_u32 s{sW}, 0")
    e("s_cbranch_scc1 K1_lbdone")
    e(f"v_lshlrev_b32 v{vAd}, 3, v{vLane}")
    for s_ in range(8):
        e(f"ds_read_b64 v[{vES+2*s_}:{vES+2*s_+1}], v{vAd} offset:{EB+s_*512}")
    e("s_waitcnt lgkmcnt(0)")
    for s_ in range(1, 8):
        cmad(vES, vES + 1, vQ, vQ + 1, vES + 2 * s_, vES + 2 * s_ + 1, vt0, vt1)
    e(f"s_lshl_b32 s52, s{sC}, 4")
    e(f"s_add_u32 s52, s52, s{sG}")
    e("s_lshl_b32 s52, s52, 9")
    e(f"s_add_u32 s52, s52, {AGG}")
    e(f"v_add_u32 v{vt0}, s52, v{vAd}")
    e(f"buffer_store_dwordx2 v[{vES}:{vES+1}], v{vt0}, s[{SH}:{SH+3}], 0 offen sc1")
    e(f"v_mov_b32 v{vHr}, 0")
    e(f"v_mov_b32 v{vHi}, 0")
    e(f"s_lshl_b32 s57, 1, s{sC}")
    e("s_sub_u32 s52, s57, 1")
    e("s_mov_b32 s56, 0")
    e("s_waitcnt vmcnt(1)")
    e("K1_poll:")
    e(f"v_readlane_b32 s53, v{vFl}, s{sG}")
    e(f"v_and_b32 v{vt0}, s57, v{vFl}")
    e(f"v_cmp_eq_u32 vcc, 0, v{vt0}")
    e("s_and_b32 s53, s53, s52")
    e("s_cmp_eq_u32 s53, s52")
    e("s_cbranch_scc0 K1_pollagain")
    e("s_cmp_eq_u64 vcc, 0")
    e("s_cbranch_scc1 K1_polldone")
    e("K1_pollagain:")
    e(f"buffer_load_dword v{vFl}, v{vFa}, s[{SD}:{SD+3}], 0 offen sc1")
    e("s_add_u32 s56, s56, 1")
    e("s_waitcnt vmcnt(0)")
    e("s_cmp_lt_u32 s56, 0x200000")
    e("s_cbranch_scc1 K1_poll")
    e("K1_polldone:")
    e(f"s_cmp_eq_u32 s{sC}, 0")
    e("s_cbranch_scc1 K1_nogather")
    e(f"s_lshl_b32 s52, s{sG}, 9")
    e(f"s_add_u32 s52, s52, {AGG}")
    e(f"v_add_u32 v{vFl}, s52, v{vAd}")
    e("s_mov_b32 s56, 0")
    e("K1_round:")
    for cp in range(15):
        e(f"s_mov_b32 s53, {cp*8192}")
        e(f"buffer_load_dwordx2 v[{vAcc+2*cp}:{vAcc+2*cp+1}], v{vFl}, s[{SH}:{SH+3}], s53 offen sc1")
    e("s_add_u32 s56, s56, 1")
    e("s_cmp_ge_u32 s56, 0x100000")
    e("s_waitcnt vmcnt(0)")
    e("s_cbranch_scc1 K1_allvalid")
    for cp in range(15):
        e(f"s_cmp_le_u32 s{sC}, {cp}")
        e("s_cbranch_scc1 K1_allvalid")
        e(f"v_cmp_eq_u32 vcc, -1, v{vAcc+2*cp}")
        e(f"v_cmp_eq_u32 s[54:55], -1, v{vAcc+2*cp+1}")
        e("s_or_b64 s[54:55], s[54:55], vcc")
        e("s_cbranch_scc1 K1_round")
    e("K1_allvalid:")
    for cp in range(15):
        e(f"s_cmp_le_u32 s{sC}, {cp}")
        e("s_cbranch_scc1 K1_nogather")
        cmad(vHr, vHi, vQ + 2, vQ + 3, vAcc + 2 * cp, vAcc + 2 * cp + 1, vt0, vt1)
    e("K1_nogather:")
    e(f"ds_write_b64 v{vAd}, v[{vHr}:{vHi}] offset:{HB}")
    e("s_waitcnt lgkmcnt(0)")
    e("K1_lbdone:")
    e("s_barrier")
    stamp(4)
    e(f"v_lshlrev_b32 v{vAd}, 3, v{vL31}")
    e(f"s_lshl_b32 s52, s{sWn}, 8")
    e(f"v_add_u32 v{vAd}, s52, v{vAd}")
    e(f"ds_read_b64 v[{vHr}:{vHi}], v{vAd} offset:{HB}")
    for s_ in range(6):
        e(f"ds_read_b64 v[{vES+2*s_}:{vES+2*s_+1}], v{vAd} offset:{EB+s_*512}")
    e(f"s_lshl_b32 s52, s{sT2}, 9")
    e(f"v_add_u32 v{vt0}, s52, v{vAd}")
    e(f"ds_read_b64 v[{vE2}:{vE2+1}], v{vt0} offset:{EB}")
    e("s_waitcnt lgkmcnt(0)")
    for s_ in range(6):
        e(f"s_cmp_le_u32 s{sT2}, {s_}")
        e("s_cbranch_scc1 K1_cdone")
        cmad(vHr, vHi, vP + 2, vP + 3, vES + 2 * s_, vES + 2 * s_ + 1, vt0, vt1)
    e("K1_cdone:")
    e("s_mov_b32 s54, 0")
    e("s_mov_b32 s55, -1")
    e("s_mov_b64 exec, s[54:55]")
    cmad(vHr, vHi, vP + 2, vP + 3, vE2, vE2 + 1, vt0, vt1)
    e("s_mov_b64 exec, -1")
    s2r, s2i = vP + 4, vP + 5
    for q in range(16):
        cmad(vHr, vHi, lr, li, vR + q, vR + 16 + q, vt0, vt1)
        e(f"v_mul_f32 v{vAcc+q}, v{s2r}, v{vHr}")
        e(f"v_fma_f32 v{vAcc+q}, -v{s2i}, v{vHi}, v{vAcc+q}")
        e(f"v_mul_f32 v{vAcc+16+q}, -v{s2r}, v{vHi}")
        e(f"v_fma_f32 v{vAcc+16+q}, -v{s2i}, v{vHr}, v{vAcc+16+q}")
    vPk = vAcc + 32
    for p in range(16):
        e(f"v_cvt_pk_bf16_f32 v{vPk+p}, v{vAcc+2*p}, v{vAcc+2*p+1}")
    e(f"s_lshl_b32 s52, s{sW}, 12")
    e(f"s_add_u32 s52, s52, {TB}")
    e(f"v_lshlrev_b32 v{vAd}, 6, v{vL31}")
    e(f"v_lshl_add_u32 v{vAd}, v{vHh}, 5, v{vAd}")
    e(f"v_add_u32 v{vAd}, s52, v{vAd}")
    e(f"ds_write_b128 v{vAd}, v[{vPk}:{vPk+3}]")
    e(f"ds_write_b128 v{vAd}, v[{vPk+4}:{vPk+7}] offset:16")
    e(f"ds_write_b128 v{vAd}, v[{vPk+8}:{vPk+11}] offset:2048")
    e(f"ds_write_b128 v{vAd}, v[{vPk+12}:{vPk+15}] offset:2064")
    e(f"v_lshrrev_b32 v{vt0}, 4, v{vLane}")
    e(f"v_lshrrev_b32 v{vt1}, 2, v{vLane}")
    e(f"v_and_b32 v{vt1}, 3, v{vt1}")
    e(f"v_lshl_add_u32 v{vt1}, v{vt0}, 3, v{vt1}")
    e(f"v_lshlrev_b32 v{vt1}, 6, v{vt1}")
    e(f"v_and_b32 v{vAd}, 3, v{vLane}")
    e(f"v_lshl_add_u32 v{vt1}, v{vAd}, 3, v{vt1}")
    e(f"v_add_u32 v{vt1}, s52, v{vt1}")
    e(f"v_and_b32 v{vAd}, 15, v{vLane}")
    e(f"s_lshl_b32 s52, s{sC}, 7")
    e(f"s_lshl_b32 s53, s{sT2}, 4")
    e("s_add_u32 s52, s52, s53")
    e(f"v_add_u32 v{vAd}, s52, v{vAd}")
    e(f"v_lshlrev_b32 v{vAd}, 12, v{vAd}")
    e(f"v_lshl_add_u32 v{vAd}, v{vt0}, 4, v{vAd}")
    e(f"s_lshl_b32 s52, s{sG}, 7")
    e(f"s_lshl_b32 s53, s{sWn}, 6")
    e("s_add_u32 s52, s52, s53")
    e(f"v_add_u32 v{vAd}, s52, v{vAd}")
    e(f"v_add_u32 v{vt0}, {16*4096}, v{vAd}")
    e("s_waitcnt lgkmcnt(0)")
    vO = vR
    for part in range(2):
        for th in range(2):
            b = vO + (part * 2 + th) * 4
            for u in range(2):
                e(f"ds_read_b64_tr_b16 v[{b+2*u}:{b+2*u+1}], v{vt1} offset:{part*2048 + u*256 + th*32}")
    e("s_waitcnt lgkmcnt(0)")
    for part in range(2):
        for th in range(2):
            b = vO + (part * 2 + th) * 4
            e(f"buffer_store_dwordx4 v[{b}:{b+3}], v{vAd if th == 0 else vt0}, s[{SH}:{SH+3}], 0 offen offset:{part*2048} sc1")
    stamp(5)
    e(f"v_mov_b32 v{vt0}, s{sHF}")
    e(f"v_mov_b32 v{vt1}, 1")
    e("s_waitcnt vmcnt(0)")
    e("s_mov_b64 exec, 1")
    e(f"buffer_store_dword v{vt1}, v{vt0}, s[{SH}:{SH+3}], 0 offen sc1")
    e("s_mov_b64 exec, -1")
    stamp(10)
    e("s_barrier")
    stamp(11)
    NS = 6; SLOT = 24576; NST = 32; PF = NS - 1
    sWt, sKC = 44, 45
    SC, SO = 20, 24
    vDA = 4; vDB = 5
    vX = 20; vD = 28; vS = 36; vT = 52
    vFA = 64; vFB = 76
    vAcc = 96; vR = 128; vOA = 144
    t0, t1, t2 = vT, vT + 1, vT + 2
    e(f"s_and_b32 s{sWt}, s{sW}, 3")
    e(f"v_lshrrev_b32 v{t0}, 3, v{vLane}")
    e(f"v_and_b32 v{t0}, 3, v{t0}")
    e(f"v_lshl_add_u32 v{t0}, v{vHh}, 4, v{t0}")
    e(f"v_lshrrev_b32 v{t1}, 4, v{vLane}")
    e(f"v_and_b32 v{t2}, 7, v{vLane}")
    e(f"v_xor_b32 v{t1}, v{t1}, v{t2}")
    e(f"s_lshl_b32 s52, s{sKh}, 5")
    e(f"s_lshl_b32 s53, s{sWt}, 2")
    e("s_add_u32 s52, s52, s53")
    e(f"s_lshl_b32 s53, s{sG}, 6")
    e("s_add_u32 s52, s52, s53")
    e(f"v_add_u32 v{vDA}, s52, v{t0}")
    e(f"v_lshlrev_b32 v{vDA}, 11, v{vDA}")
    e(f"s_and_b32 s53, s{sW}, 1")
    e("s_lshl_b32 s53, s53, 2")
    e(f"v_xor_b32 v{t2}, s53, v{t1}")
    e(f"v_lshl_add_u32 v{vDA}, v{t2}, 4, v{vDA}")
    for i in range(2):
        e(f"s_lshl_b32 s52, s{sC}, 7")
        e(f"s_lshl_b32 s53, s{sW}, 4")
        e("s_add_u32 s52, s52, s53")
        e(f"s_add_u32 s52, s52, {8*i}")
        e(f"v_lshrrev_b32 v{vDB+i}, 3, v{vLane}")
        e(f"v_add_u32 v{vDB+i}, s52, v{vDB+i}")
        e(f"v_lshlrev_b32 v{vDB+i}, 12, v{vDB+i}")
        e(f"v_xor_b32 v{t2}, {4*i}, v{t1}")
        e(f"v_lshl_add_u32 v{vDB+i}, v{t2}, 4, v{vDB+i}")
    e(f"s_lshl_b32 s{sM0A}, s{sW}, 10")
    e(f"s_lshl_b32 s{sM0B}, s{sW}, 11")
    e(f"s_add_u32 s{sM0B}, s{sM0B}, 8192")
    srd(SC, 84, 1024 * 1024 * 2)
    def setk2(j):
        e(f"s_add_u32 s{sKC}, s{sG}, {j>>1}")
        e(f"s_and_b32 s{sKC}, s{sKC}, 15")
        e(f"s_lshl_b32 s{sKC}, s{sKC}, 7")
        e(f"s_add_u32 s{sK}, s{sKC}, {(j&1)*2048}")
        e(f"s_mov_b32 s{SC}, s{84 + 2*(j&1)}")
        e(f"s_and_b32 s{SC+1}, s{85 + 2*(j&1)}, 0xffff")
    def dma2(i3, slot_imm=None):
        base = sM0A if i3 == 0 else sM0B
        off = 0 if i3 == 0 else (i3 - 1) * 1024
        if slot_imm is not None:
            e(f"s_add_u32 m0, s{base}, {slot_imm*SLOT + off}")
        else:
            e(f"s_add_u32 s61, s{base}, s{sWr}")
            e(f"s_add_u32 m0, s61, {off}")
        e("s_nop 0")
        if i3 == 0:
            e(f"buffer_load_dwordx4 v{vDA}, s[{SC}:{SC+3}], s{sKC} offen lds")
        else:
            e(f"buffer_load_dwordx4 v{vDB+i3-1}, s[{SH}:{SH+3}], s{sK} offen sc1 lds")
    for st in range(PF):
        setk2(st)
        dma2(0, st)
    srd(SO, 90, 2048 * 1024 * 4)
    e(f"s_lshl_b32 s52, s{sC}, 7")
    e(f"s_lshl_b32 s53, s{sWt}, 5")
    e("s_add_u32 s52, s52, s53")
    e(f"v_add_u32 v{t0}, s52, v{vL31}")
    e(f"s_lshl_b32 s52, s{sG}, 6")
    e(f"s_lshl_b32 s53, s{sKh}, 5")
    e("s_add_u32 s52, s52, s53")
    e(f"v_lshlrev_b32 v{t1}, 4, v{vHh}")
    e(f"v_add_u32 v{t1}, s52, v{t1}")
    e(f"v_lshlrev_b32 v{t2}, 1, v{t1}")
    e(f"global_load_dwordx4 v[{vD}:{vD+3}], v{t2}, s[88:89]")
    e(f"global_load_dwordx4 v[{vD+4}:{vD+7}], v{t2}, s[88:89] offset:16")
    e(f"v_lshl_add_u32 v{t2}, v{t0}, 11, v{t2}")
    e(f"global_load_dwordx4 v[{vX}:{vX+3}], v{t2}, s[4:5]")
    e(f"global_load_dwordx4 v[{vX+4}:{vX+7}], v{t2}, s[4:5] offset:16")
    for st in range(2):
        setk2(st)
        dma2(1, st); dma2(2, st)
    e(f"v_lshlrev_b32 v{vOA}, 2, v{t1}")
    e(f"v_lshl_add_u32 v{vOA}, v{t0}, 12, v{vOA}")
    e(f"v_lshrrev_b32 v{t0}, 1, v{vL31}")
    e(f"v_and_b32 v{t0}, 7, v{t0}")
    e(f"v_xor_b32 v{t0}, v{t0}, v{vHh}")
    e(f"s_lshl_b32 s52, s{sKh}, 2")
    for ks in range(2):
        e(f"s_add_u32 s53, s52, {2*ks}")
        e(f"v_xor_b32 v{t1}, s53, v{t0}")
        e(f"v_lshlrev_b32 v{t1}, 4, v{t1}")
        e(f"v_lshl_add_u32 v{vRA+ks}, v{vL31}, 7, v{t1}")
        e(f"s_lshl_b32 s53, s{sWt}, 12")
        e("s_add_u32 s53, s53, 8192")
        e(f"v_add_u32 v{vRB+ks}, s53, v{vRA+ks}")
    for i in range(32):
        e(f"v_mov_b32 v{vAcc+i}, 0")
    e("s_waitcnt vmcnt(4)")
    for p in range(8):
        e(f"v_lshlrev_b32 v{t0}, 16, v{vX+p}")
        e(f"v_and_b32 v{t1}, 0xffff0000, v{vX+p}")
        e(f"v_lshlrev_b32 v{t2}, 16, v{vD+p}")
        e(f"v_and_b32 v{t2+1}, 0xffff0000, v{vD+p}")
        e(f"v_mul_f32 v{t0}, v{t0}, v{t2}")
        e(f"v_mul_f32 v{t1}, v{t1}, v{t2+1}")
        e(f"v_cvt_pk_bf16_f32 v{t0}, v{t0}, v{t1}")
        e(f"v_lshlrev_b32 v{vS+2*p}, 16, v{t0}")
        e(f"v_and_b32 v{vS+2*p+1}, 0xffff0000, v{t0}")
    stamp(12)
    e(f"s_cmp_lg_u32 s{sW}, 0")
    e("s_cbranch_scc1 K2_polldone")
    e(f"v_lshlrev_b32 v{vT+4}, 3, v{vLane}")
    e(f"s_lshl_b32 s52, s{sC}, 9")
    e(f"s_add_u32 s52, s52, {HFL}")
    e(f"v_add_u32 v{vT+5}, s52, v{vT+4}")
    e("s_mov_b32 s56, 0")
    e("K2_poll:")
    e(f"buffer_load_dwordx2 v[{vT+6}:{vT+7}], v{vT+5}, s[{SH}:{SH+3}], 0 offen sc1")
    e("s_add_u32 s56, s56, 1")
    e("s_waitcnt vmcnt(0)")
    e(f"v_cmp_ne_u32 vcc, 1, v{vT+6}")
    e(f"v_cmp_ne_u32 s[54:55], 1, v{vT+7}")
    e("s_or_b64 s[54:55], s[54:55], vcc")
    e("s_cbranch_scc0 K2_pollok")
    e("s_cmp_lt_u32 s56, 0x200000")
    e("s_cbranch_scc1 K2_poll")
    e("K2_pollok:")
    e("s_mov_b64 exec, -1")
    e("K2_polldone:")
    e("s_barrier")
    stamp(6)
    for st in range(2, PF):
        setk2(st)
        dma2(1, st); dma2(2, st)
    def rd2(va, vb, fb):
        r = []
        for mt in range(2):
            r.append(f"ds_read_b128 v[{fb+mt*4}:{fb+mt*4+3}], v{va} offset:{mt*4096}")
        r.append(f"ds_read_b128 v[{fb+8}:{fb+11}], v{vb}")
        return r
    def mf2(fb):
        r = []
        for mt in range(2):
            a = vAcc + mt * 16
            r.append(f"v_mfma_f32_32x32x16_bf16 v[{a}:{a+15}], v[{fb+mt*4}:{fb+mt*4+3}], v[{fb+8}:{fb+11}], v[{a}:{a+15}]")
        return r
    e(f"s_waitcnt vmcnt({2*(PF-2)})")
    e("s_barrier")
    stamp(7)
    for s_ in rd2(vRA, vRB, vFA): e(s_)
    e(f"s_mov_b32 s{sI}, 0")
    e(f"s_mov_b32 s{sRd}, 0")
    e(f"s_mov_b32 s{sRdN}, {SLOT}")
    e(f"s_mov_b32 s{sWr}, {PF*SLOT}")
    def book2(nxt_pf):
        e(f"s_mov_b32 s{sWr}, s{sRd}")
        e(f"s_mov_b32 s{sRd}, s{sRdN}")
        e(f"s_add_u32 s{sRdN}, s{sRdN}, {SLOT}")
        e(f"s_cmp_ge_u32 s{sRdN}, {NS*SLOT}")
        e(f"s_cselect_b32 s{sRdN}, 0, s{sRdN}")
        e(f"s_add_u32 s{sI}, s{sI}, 1")
        e(f"v_add_u32 v{vA1}, s{sRd}, v{vRA+1}")
        e(f"v_add_u32 v{vB1}, s{sRd}, v{vRB+1}")
        e(f"v_add_u32 v{vA0}, s{sRdN}, v{vRA}")
        e(f"v_add_u32 v{vB0}, s{sRdN}, v{vRB}")
        if nxt_pf:
            e(f"s_add_u32 s52, s{sI}, {PF}")
            e("s_lshr_b32 s53, s52, 1")
            e(f"s_add_u32 s{sKC}, s{sG}, s53")
            e(f"s_and_b32 s{sKC}, s{sKC}, 15")
            e(f"s_lshl_b32 s{sKC}, s{sKC}, 7")
            e("s_and_b32 s52, s52, 1")
            e("s_lshl_b32 s53, s52, 11")
            e(f"s_add_u32 s{sK}, s{sKC}, s53")
            e("s_cmp_eq_u32 s52, 0")
            e(f"s_cselect_b32 s{SC}, s84, s86")
            e(f"s_cselect_b32 s53, s85, s87")
            e(f"s_and_b32 s{SC+1}, s53, 0xffff")
    def body2(with_dma, wait):
        rB = rd2(vA1, vB1, vFB); mA = mf2(vFA)
        e(mA[0])
        for s_ in rB: e(s_)
        if with_dma: dma2(0)
        e(mA[1])
        for s_ in rd2(vA0, vB0, vFA): e(s_)
        if with_dma: dma2(1)
        e("s_waitcnt lgkmcnt(3)")
        mB = mf2(vFB)
        e(mB[0])
        if with_dma: dma2(2)
        book2(with_dma)
        e(mB[1])
        e(wait)
    e(f"v_add_u32 v{vA1}, s{sRd}, v{vRA+1}")
    e(f"v_add_u32 v{vB1}, s{sRd}, v{vRB+1}")
    e(f"v_add_u32 v{vA0}, s{sRdN}, v{vRA}")
    e(f"v_add_u32 v{vB0}, s{sRdN}, v{vRB}")
    setk2(PF)
    e("s_waitcnt lgkmcnt(0)")
    body2(True, "s_waitcnt vmcnt(7) lgkmcnt(0)")
    e("s_barrier")
    body2(True, "s_waitcnt vmcnt(8) lgkmcnt(0)")
    e("s_barrier")
    e("K2_loop:")
    body2(True, f"s_waitcnt vmcnt({3*(PF-2)}) lgkmcnt(0)")
    e(f"s_cmp_lt_u32 s{sI}, {NST-PF}")
    e("s_barrier")
    e("s_cbranch_scc1 K2_loop")
    for j in range(PF):
        n = 3 * (PF - 3 - j)
        body2(False, f"s_waitcnt vmcnt({n}) lgkmcnt(0)" if n >= 0 else "s_waitcnt lgkmcnt(0)")
        e("s_barrier")
    stamp(8)
    vXW, vXR = vT, vT + 1
    e(f"v_lshlrev_b32 v{vXW}, 4, v{vLane}")
    e(f"s_lshl_b32 s52, s{sW}, 12")
    e(f"s_xor_b32 s53, s52, {4<<12}")
    e(f"v_add_u32 v{vXR}, s53, v{vXW}")
    e(f"v_add_u32 v{vXW}, s52, v{vXW}")
    e("s_nop 7")
    e("s_nop 3")
    e(f"s_cmp_eq_u32 s{sKh}, 0")
    e("s_cbranch_scc0 K2_w1")
    for i in range(4):
        e(f"ds_write_b128 v{vXW}, v[{vAcc+16+i*4}:{vAcc+16+i*4+3}] offset:{i*1024}")
    for i in range(16):
        e(f"v_add_f32 v{vS+i}, v{vS+i}, v{vAcc+i}")
    e("s_branch K2_wd")
    e("K2_w1:")
    for i in range(4):
        e(f"ds_write_b128 v{vXW}, v[{vAcc+i*4}:{vAcc+i*4+3}] offset:{i*1024}")
    for i in range(16):
        e(f"v_add_f32 v{vS+i}, v{vS+i}, v{vAcc+16+i}")
    e("K2_wd:")
    e("s_waitcnt lgkmcnt(0)")
    e("s_barrier")
    for i in range(4):
        e(f"ds_read_b128 v[{vR+i*4}:{vR+i*4+3}], v{vXR} offset:{i*1024}")
    e("s_waitcnt lgkmcnt(0)")
    for i in range(16):
        e(f"v_add_f32 v{vR+i}, v{vR+i}, v{vS+i}")
    for i in range(4):
        e(f"buffer_store_dwordx4 v[{vR+i*4}:{vR+i*4+3}], v{vOA}, s[{SO}:{SO+3}], 0 offen offset:{i*16}")
    stamp(9)
    if STAMP:
        e(f"s_cmp_lg_u32 s{sW}, 0")
        e(f"s_cbranch_scc1 KF_done")
        e("s_mov_b64 exec, 1")
        e(f"s_lshl_b32 s62, s2, 6")
        e(f"s_add_u32 s62, s62, {STB}")
        e(f"v_mov_b32 v{vT}, s62")
        e(f"v_mov_b32 v{vT+2}, 128")
        for i in range(13):
            e(f"v_mov_b32 v{vT+1}, s{70+i}")
            e(f"buffer_store_dword v{vT+1}, v{vT}, s[{SH}:{SH+3}], 0 offen offset:{4*i}")
            e("s_cmp_lg_u32 s2, 100")
            e(f"s_cbranch_scc1 SK{i}")
            e(f"buffer_store_dword v{vT+1}, v{vT+2}, s[{SD}:{SD+3}], 0 offen offset:{4*i}")
            e(f"SK{i}:")
    e("KF_done:")
    e("s_endpgm")

gen()
out = HDR + "\n".join(L) + f"""
.section .rodata,"a"
.p2align 6
.amdhsa_kernel {KN}
  .amdhsa_next_free_vgpr 232
  .amdhsa_next_free_sgpr 96
  .amdhsa_accum_offset 232
  .amdhsa_group_segment_fixed_size 0
  .amdhsa_kernarg_size 96
  .amdhsa_user_sgpr_count 2
  .amdhsa_user_sgpr_kernarg_segment_ptr 1
  .amdhsa_system_sgpr_workgroup_id_x 1
  .amdhsa_float_denorm_mode_32 3
.end_amdhsa_kernel
"""
path = sys.argv[1] if len(sys.argv) > 1 else "standalone__ssm_conv_s5__prompt.s"
open(path, "w").write(out)
print("wrote", path, len(out), "bytes")
```

```python
import sys, os, struct

L = []
STAMP = os.environ.get("STAMP", "0") == "1"
ROT = int(os.environ.get("ROT", "15"))
def e(s=""):
    L.append("    " + s if s and not s.endswith(":") and not s.startswith(".") and not s.startswith(";") else s)

LOG2E = 0x3fb8aa3b
INV2PI = 0x3e22f983
AGG = 8 * 1024 * 1024
HFL = AGG + 131072
STB = HFL + 8192
KN = "standalone__ssm_conv_s5__prompt_kernel"

HDR = """; Kernarg layout (96 bytes): x, Lambda_re, Lambda_im, B_re, B_im, C_re, C_im, log_dt, Dskip, out, debug, ws
; @launch grid=(256,1,1) block=(512,1,1) lds=163840
.amdgcn_target "amdgcn-amd-amdhsa--gfx950"
.text
"""

def srd(d, base, size):
    e(f"s_mov_b32 s{d}, s{base}")
    e(f"s_and_b32 s{d+1}, s{base+1}, 0xffff")
    e(f"s_mov_b32 s{d+2}, {size}")
    e(f"s_mov_b32 s{d+3}, 0x00020000")

def stamp(n):
    if STAMP:
        e(f"s_memrealtime s[62:63]")
        e("s_waitcnt lgkmcnt(0)")
        e(f"s_mov_b32 s{70+n}, s62")

def lam_params(vch, out, tmp, sLre, sLim, sLdt, want):
    e(f"v_lshlrev_b32 v{tmp+3}, 1, v{vch}")
    e(f"global_load_ushort v{tmp}, v{tmp+3}, s[{sLre}:{sLre+1}]")
    e(f"global_load_ushort v{tmp+1}, v{tmp+3}, s[{sLim}:{sLim+1}]")
    e(f"global_load_ushort v{tmp+2}, v{tmp+3}, s[{sLdt}:{sLdt+1}]")
    def compute():
        lre, lim, ldt = tmp, tmp + 1, tmp + 2
        a, b, c, d, f, g = tmp + 3, tmp + 4, tmp + 5, tmp + 6, tmp + 7, tmp + 8
        e(f"v_lshlrev_b32 v{lre}, 16, v{lre}")
        e(f"v_lshlrev_b32 v{lim}, 16, v{lim}")
        e(f"v_lshlrev_b32 v{ldt}, 16, v{ldt}")
        e(f"v_mul_f32 v{a}, {LOG2E:#x}, v{ldt}")
        e(f"v_exp_f32 v{a}, v{a}")
        e("s_nop 0")
        e(f"v_cvt_pk_bf16_f32 v{a}, v{a}, v{a}")
        e(f"v_lshlrev_b32 v{a}, 16, v{a}")
        e(f"v_mul_f32 v{b}, v{a}, v{lre}")
        e(f"v_mul_f32 v{c}, v{a}, v{lim}")
        e(f"v_mul_f32 v{b}, {LOG2E:#x}, v{b}")
        e(f"v_mul_f32 v{c}, {INV2PI:#x}, v{c}")
        for nm, n in (("l1", 1.0), ("l16", 16.0), ("l128", 128.0)):
            if nm + "r" not in want and not (nm == "l1" and "s2r" in want):
                continue
            rr = out.get(nm + "r", tmp + 9); ii = out.get(nm + "i", tmp + 10)
            nb = struct.unpack("<I", struct.pack("<f", n))[0]
            e(f"v_mul_f32 v{d}, {nb:#x}, v{b}")
            e(f"v_mul_f32 v{f}, {nb:#x}, v{c}")
            e(f"v_exp_f32 v{d}, v{d}")
            e(f"v_fract_f32 v{f}, v{f}")
            e(f"v_cos_f32 v{g}, v{f}")
            e(f"v_sin_f32 v{f}, v{f}")
            e("s_nop 0")
            e(f"v_mul_f32 v{rr}, v{d}, v{g}")
            e(f"v_mul_f32 v{ii}, v{d}, v{f}")
            if nm == "l1" and "s2r" in want:
                e(f"v_add_f32 v{d}, -1.0, v{rr}")
                e(f"v_mul_f32 v{f}, v{lre}, v{lre}")
                e(f"v_fma_f32 v{f}, v{lim}, v{lim}, v{f}")
                e(f"v_rcp_f32 v{f}, v{f}")
                e(f"v_mul_f32 v{g}, v{d}, v{lre}")
                e(f"v_fma_f32 v{g}, v{ii}, v{lim}, v{g}")
                e(f"v_mul_f32 v{a}, v{ii}, v{lre}")
                e(f"v_fma_f32 v{a}, -v{d}, v{lim}, v{a}")
                e(f"v_add_f32 v{f}, v{f}, v{f}")
                e(f"v_mul_f32 v{out['s2r']}, v{g}, v{f}")
                e(f"v_mul_f32 v{out['s2i']}, v{a}, v{f}")
    return compute

def cmad(hr, hi, lr, li, br, bi, t0, t1):
    e(f"v_fma_f32 v{t0}, v{lr}, v{hr}, v{br}")
    e(f"v_fma_f32 v{t1}, v{lr}, v{hi}, v{bi}")
    e(f"v_fma_f32 v{t0}, -v{li}, v{hi}, v{t0}")
    e(f"v_fma_f32 v{hi}, v{li}, v{hr}, v{t1}")
    e(f"v_mov_b32 v{hr}, v{t0}")

def gen():
    e(f".globl {KN}")
    e(".p2align 8")
    e(f".type {KN},@function")
    e(f"{KN}:")
    e("s_cmp_ge_u32 s2, 256")
    e("s_cbranch_scc1 KF_done")
    e("s_load_dwordx4 s[4:7], s[0:1], 0")
    e("s_load_dwordx4 s[8:11], s[0:1], 16")
    e("s_load_dwordx2 s[12:13], s[0:1], 32")
    e("s_load_dwordx2 s[14:15], s[0:1], 56")
    e("s_load_dwordx4 s[16:19], s[0:1], 80")
    e("s_load_dwordx4 s[84:87], s[0:1], 40")
    e("s_load_dwordx4 s[88:91], s[0:1], 64")
    NS = 5; SLOT = 32768; NST = 16; PF = 4
    sC, sG, sW, sKh, sWm, sWn, sT2, sK, sM0A, sM0B = 40, 41, 42, 43, 44, 45, 46, 47, 48, 49
    sI, sRd, sRdN, sWr = 36, 37, 38, 39
    sHF = 58
    SX, SB, SH, SD = 20, 24, 28, 32
    e("s_and_b32 s3, s2, 7")
    e("s_lshr_b32 s60, s2, 3")
    e("s_lshr_b32 s52, s3, 1")
    e("s_lshl_b32 s52, s52, 2")
    e("s_lshr_b32 s53, s60, 3")
    e(f"s_add_u32 s{sC}, s52, s53")
    e("s_and_b32 s52, s3, 1")
    e("s_lshl_b32 s52, s52, 3")
    e("s_and_b32 s53, s60, 7")
    e(f"s_add_u32 s{sG}, s52, s53")
    e(f"s_and_b32 s60, s60, {ROT}")
    vLane = 1; vL31 = 2; vHh = 3
    vDA = 4; vDB = 6
    vRA = 8; vRB = 10
    vA0, vB0, vA1, vB1 = 12, 13, 14, 15
    vP = 20; vQ = 26
    vT = 30; vT2 = 48
    vFA = 64; vFB = 80
    vAcc = 96
    vR = 160
    vE = 192
    e(f"v_and_b32 v{vLane}, 63, v0")
    e(f"v_lshrrev_b32 v{vT}, 6, v0")
    e("s_nop 0")
    e(f"v_readfirstlane_b32 s{sW}, v{vT}")
    e(f"v_and_b32 v{vL31}, 31, v0")
    e(f"v_lshrrev_b32 v{vHh}, 5, v{vLane}")
    t0, t1, t2 = vE, vE + 1, vE + 2
    e(f"v_lshrrev_b32 v{t0}, 3, v{vLane}")
    e(f"v_and_b32 v{t0}, 3, v{t0}")
    e(f"v_lshl_add_u32 v{t0}, v{vHh}, 4, v{t0}")
    e(f"v_lshrrev_b32 v{t1}, 4, v{vLane}")
    e(f"v_and_b32 v{t2}, 7, v{vLane}")
    e(f"v_xor_b32 v{t1}, v{t1}, v{t2}")
    e(f"s_lshr_b32 s{sKh}, s{sW}, 2")
    e(f"s_lshr_b32 s{sWm}, s{sW}, 1")
    e(f"s_and_b32 s{sWm}, s{sWm}, 1")
    e(f"s_and_b32 s{sWn}, s{sW}, 1")
    e(f"s_lshl_b32 s{sT2}, s{sWm}, 1")
    e(f"s_add_u32 s{sT2}, s{sT2}, s{sKh}")
    e(f"s_lshl_b32 s{sT2}, s{sT2}, 1")
    for i in range(2):
        e(f"s_lshl_b32 s52, s{sW}, 1")
        e(f"s_add_u32 s52, s52, {i}")
        e("s_lshr_b32 s53, s52, 2")
        e("s_lshl_b32 s53, s53, 5")
        e("s_and_b32 s52, s52, 3")
        e("s_lshl_b32 s52, s52, 2")
        e("s_add_u32 s52, s52, s53")
        e(f"s_lshl_b32 s53, s{sC}, 7")
        e("s_add_u32 s52, s52, s53")
        e(f"v_add_u32 v{vDA+i}, s52, v{t0}")
        e(f"v_lshlrev_b32 v{vDA+i}, 11, v{vDA+i}")
        e(f"v_xor_b32 v{t2}, {4*i}, v{t1}")
        e(f"v_lshl_add_u32 v{vDA+i}, v{t2}, 4, v{vDA+i}")
        e(f"s_lshl_b32 s52, s{sG}, 6")
        e(f"s_lshl_b32 s53, s{sKh}, 5")
        e("s_add_u32 s52, s52, s53")
        e(f"s_lshl_b32 s53, s{sWn}, 4")
        e("s_add_u32 s52, s52, s53")
        e(f"s_add_u32 s52, s52, {8*i}")
        e(f"v_lshrrev_b32 v{vDB+i}, 3, v{vLane}")
        e(f"v_add_u32 v{vDB+i}, s52, v{vDB+i}")
        e(f"v_lshlrev_b32 v{vDB+i}, 11, v{vDB+i}")
        e(f"v_lshl_add_u32 v{vDB+i}, v{t2}, 4, v{vDB+i}")
    e(f"s_lshl_b32 s{sM0A}, s{sW}, 11")
    e(f"s_add_u32 s{sM0B}, s{sM0A}, 16384")
    e("s_waitcnt lgkmcnt(0)")
    stamp(0)
    srd(SX, 4, 2048 * 1024 * 2)
    e(f"s_cmp_eq_u32 s{sWm}, 0")
    e("s_cselect_b32 s52, s10, s12")
    e("s_cselect_b32 s53, s11, s13")
    srd(SB, 52, 1024 * 1024 * 2)
    def setk_imm(st):
        e(f"s_add_u32 s{sK}, s60, {st}")
        e(f"s_and_b32 s{sK}, s{sK}, 15")
        e(f"s_lshl_b32 s{sK}, s{sK}, 7")
    def dma(i4, slot_imm=None):
        base = sM0A if i4 < 2 else sM0B
        off = (i4 % 2) * 1024
        if slot_imm is not None:
            e(f"s_add_u32 m0, s{base}, {slot_imm*SLOT + off}")
        else:
            e(f"s_add_u32 s61, s{base}, s{sWr}")
            e(f"s_add_u32 m0, s61, {off}")
        e("s_nop 0")
        if i4 < 2:
            e(f"buffer_load_dwordx4 v{vDA+i4}, s[{SX}:{SX+3}], s{sK} offen lds")
        else:
            e(f"buffer_load_dwordx4 v{vDB+i4-2}, s[{SB}:{SB+3}], s{sK} offen lds")
    e(f"s_lshl_b32 s52, s{sG}, 6")
    e(f"s_lshl_b32 s53, s{sWn}, 5")
    e("s_add_u32 s53, s53, s52")
    e(f"v_add_u32 v{vT+12}, s53, v{vL31}")
    e(f"v_add_u32 v{vT2+12}, s52, v{vLane}")
    cp1 = lam_params(vT + 12, dict(l1r=vP, l1i=vP+1, l16r=vP+2, l16i=vP+3, s2r=vP+4, s2i=vP+5), vT, 6, 8, 14,
                     {"l1r", "l16r", "s2r"})
    cp2 = lam_params(vT2 + 12, dict(l16r=vQ, l16i=vQ+1, l128r=vQ+2, l128i=vQ+3), vT2, 6, 8, 14, {"l16r", "l128r"})
    for st in range(PF):
        setk_imm(st)
        for i4 in range(4):
            dma(i4, st)
    srd(SH, 18, STB + (65536 if STAMP else 0))
    srd(SD, 16, 256)
    e(f"s_lshl_b32 s52, s{sC}, 4")
    e(f"s_add_u32 s54, s52, s{sG}")
    e("s_lshl_b32 s52, s54, 9")
    e(f"s_add_u32 s52, s52, {AGG}")
    e(f"s_lshl_b32 s53, s{sW}, 6")
    e("s_add_u32 s52, s52, s53")
    e(f"v_lshlrev_b32 v{vE+3}, 2, v{vLane}")
    e(f"v_add_u32 v{vE+3}, s52, v{vE+3}")
    e(f"v_mov_b32 v{vE+4}, -1")
    e("s_lshl_b32 s52, s54, 3")
    e(f"s_add_u32 s52, s52, s{sW}")
    e("s_lshl_b32 s52, s52, 2")
    e(f"s_add_u32 s{sHF}, s52, {HFL}")
    e("s_mov_b64 exec, 0x10000")
    e(f"v_mov_b32 v{vE+3}, s{sHF}")
    e("s_mov_b64 exec, 0x1ffff")
    e(f"buffer_store_dword v{vE+4}, v{vE+3}, s[{SH}:{SH+3}], 0 offen sc1")
    e("s_mov_b64 exec, -1")
    e(f"v_lshrrev_b32 v{t0}, 1, v{vL31}")
    e(f"v_and_b32 v{t0}, 7, v{t0}")
    e(f"v_xor_b32 v{t0}, v{t0}, v{vHh}")
    e(f"s_lshl_b32 s52, s{sKh}, 2")
    for ks in range(2):
        e(f"s_add_u32 s53, s52, {2*ks}")
        e(f"v_xor_b32 v{t1}, s53, v{t0}")
        e(f"v_lshlrev_b32 v{t1}, 4, v{t1}")
        e(f"v_lshl_add_u32 v{t1}, v{vL31}, 7, v{t1}")
        e(f"s_lshl_b32 s53, s{sWm}, 13")
        e(f"v_add_u32 v{vRA+ks}, s53, v{t1}")
        e(f"s_lshl_b32 s53, s{sWn}, 13")
        e("s_add_u32 s53, s53, 16384")
        e(f"v_add_u32 v{vRB+ks}, s53, v{t1}")
    for i in range(64):
        e(f"v_mov_b32 v{vAcc+i}, 0")
    e("s_waitcnt vmcnt(17)")
    cp1(); cp2()
    e("s_waitcnt vmcnt(9)")
    def rd(va, vb, fb):
        r = []
        for mt in range(2):
            r.append(f"ds_read_b128 v[{fb+mt*4}:{fb+mt*4+3}], v{va} offset:{mt*4096}")
        for nt in range(2):
            r.append(f"ds_read_b128 v[{fb+8+nt*4}:{fb+8+nt*4+3}], v{vb} offset:{nt*4096}")
        return r
    def mf(fb):
        r = []
        for mt in range(2):
            for nt in range(2):
                a = vAcc + (mt * 2 + nt) * 16
                r.append(f"v_mfma_f32_32x32x16_bf16 v[{a}:{a+15}], v[{fb+mt*4}:{fb+mt*4+3}], v[{fb+8+nt*4}:{fb+8+nt*4+3}], v[{a}:{a+15}]")
        return r
    e("s_barrier")
    stamp(1)
    for s_ in rd(vRA, vRB, vFA): e(s_)
    e(f"s_mov_b32 s{sI}, 0")
    e(f"s_mov_b32 s{sRd}, 0")
    e(f"s_mov_b32 s{sRdN}, {SLOT}")
    e(f"s_mov_b32 s{sWr}, {PF*SLOT}")
    def book(nxt_pf):
        e(f"s_mov_b32 s{sWr}, s{sRd}")
        e(f"s_mov_b32 s{sRd}, s{sRdN}")
        e(f"s_add_u32 s{sRdN}, s{sRdN}, {SLOT}")
        e(f"s_cmp_ge_u32 s{sRdN}, {NS*SLOT}")
        e(f"s_cselect_b32 s{sRdN}, 0, s{sRdN}")
        e(f"s_add_u32 s{sI}, s{sI}, 1")
        e(f"v_add_u32 v{vA1}, s{sRd}, v{vRA+1}")
        e(f"v_add_u32 v{vB1}, s{sRd}, v{vRB+1}")
        e(f"v_add_u32 v{vA0}, s{sRdN}, v{vRA}")
        e(f"v_add_u32 v{vB0}, s{sRdN}, v{vRB}")
        if nxt_pf:
            e(f"s_add_u32 s{sK}, s{sK}, 128")
            e(f"s_and_b32 s{sK}, s{sK}, 2047")
    def body(with_dma, wait):
        rB = rd(vA1, vB1, vFB); mA = mf(vFA)
        e(mA[0]); e(rB[0]); e(rB[1])
        e(mA[1]); e(rB[2]); e(rB[3])
        if with_dma: dma(0)
        e(mA[2])
        if with_dma: dma(1)
        e(mA[3])
        for s_ in rd(vA0, vB0, vFA): e(s_)
        e("s_waitcnt lgkmcnt(4)")
        mB = mf(vFB)
        e(mB[0])
        if with_dma: dma(2)
        e(mB[1])
        if with_dma: dma(3)
        e(mB[2])
        book(with_dma)
        e(mB[3])
        e(wait)
    e(f"v_add_u32 v{vA1}, s{sRd}, v{vRA+1}")
    e(f"v_add_u32 v{vB1}, s{sRd}, v{vRB+1}")
    e(f"v_add_u32 v{vA0}, s{sRdN}, v{vRA}")
    e(f"v_add_u32 v{vB0}, s{sRdN}, v{vRB}")
    setk_imm(PF)
    e("s_waitcnt lgkmcnt(0)")
    for _ in range(2):
        body(True, "s_waitcnt vmcnt(8) lgkmcnt(0)")
        e("s_barrier")
    e(f"s_lshl_b32 s52, 1, s{sC}")
    e(f"v_mov_b32 v{t0}, s52")
    e(f"s_lshl_b32 s53, s{sG}, 2")
    e(f"v_mov_b32 v{t1}, s53")
    e(f"s_cmp_lg_u32 s{sW}, 0")
    e("s_cbranch_scc1 K1_noflag")
    e("s_mov_b64 exec, 1")
    e(f"buffer_atomic_or v{t0}, v{t1}, s[{SD}:{SD+3}], 0 offen sc1")
    e("s_mov_b64 exec, -1")
    e("K1_noflag:")
    e("K1_loop:")
    body(True, "s_waitcnt vmcnt(8) lgkmcnt(0)")
    e(f"s_cmp_lt_u32 s{sI}, {NST-PF}")
    e("s_barrier")
    e("s_cbranch_scc1 K1_loop")
    def warmup():
        e(f"s_cmp_lt_u32 s{sW}, 4")
        e("s_cselect_b32 s54, s84, s86")
        e("s_cselect_b32 s55, s85, s87")
        e(f"s_and_b32 s52, s{sC}, 3")
        e("s_lshl_b32 s52, s52, 4")
        e(f"s_and_b32 s53, s{sW}, 3")
        e("s_lshl_b32 s53, s53, 2")
        e("s_add_u32 s52, s52, s53")
        e(f"s_lshl_b32 s53, s{sG}, 6")
        e("s_add_u32 s52, s52, s53")
        e(f"v_lshrrev_b32 v{t0}, 4, v{vLane}")
        e(f"v_add_u32 v{t0}, s52, v{t0}")
        e(f"v_lshlrev_b32 v{t0}, 11, v{t0}")
        e(f"v_and_b32 v{t1}, 15, v{vLane}")
        e(f"v_lshl_add_u32 v{t0}, v{t1}, 7, v{t0}")
        if os.environ.get("WARM", "1") == "1":
            e(f"global_load_dword v{vE+30}, v{t0}, s[54:55]")
    for wi, wt in enumerate(("s_waitcnt vmcnt(4) lgkmcnt(0)", "s_waitcnt vmcnt(0) lgkmcnt(0)", "s_waitcnt lgkmcnt(0)", "s_waitcnt lgkmcnt(0)")):
        if wi == 2: warmup()
        body(False, wt)
        e("s_barrier")
    stamp(2)
    EB = 0; HB = EB + 4096; XB = 8192; TB = 73728
    vXW = vE; vXR = vE + 1; vFl = vE + 2; vFa = vE + 3; vEr = vE + 4; vEi = vE + 5; vt0 = vE + 6; vt1 = vE + 7
    vES = vE + 8
    vHr = vE + 24; vHi = vE + 25; vE2 = vE + 26
    vAd = vE + 28
    e(f"v_and_b32 v{vFa}, 15, v{vLane}")
    e(f"v_lshlrev_b32 v{vFa}, 2, v{vFa}")
    e(f"buffer_load_dword v{vFl}, v{vFa}, s[{SD}:{SD+3}], 0 offen sc1")
    e(f"v_lshlrev_b32 v{vXW}, 4, v{vLane}")
    e(f"s_lshl_b32 s52, s{sW}, 13")
    e(f"s_xor_b32 s53, s52, {4<<13}")
    e(f"s_add_u32 s52, s52, {XB}")
    e(f"s_add_u32 s53, s53, {XB}")
    e(f"v_add_u32 v{vXR}, s53, v{vXW}")
    e(f"v_add_u32 v{vXW}, s52, v{vXW}")
    e("s_nop 7")
    e(f"s_cmp_eq_u32 s{sKh}, 0")
    e("s_cbranch_scc0 K1_w1")
    for i in range(8):
        e(f"ds_write_b128 v{vXW}, v[{vAcc+32+i*4}:{vAcc+32+i*4+3}] offset:{i*1024}")
    e("s_branch K1_wd")
    e("K1_w1:")
    for i in range(8):
        e(f"ds_write_b128 v{vXW}, v[{vAcc+i*4}:{vAcc+i*4+3}] offset:{i*1024}")
    e("K1_wd:")
    e("s_waitcnt lgkmcnt(0)")
    e("s_barrier")
    for i in range(8):
        e(f"ds_read_b128 v[{vR+i*4}:{vR+i*4+3}], v{vXR} offset:{i*1024}")
    e("s_waitcnt lgkmcnt(0)")
    e(f"s_cmp_eq_u32 s{sKh}, 0")
    e("s_cbranch_scc0 K1_a1")
    for i in range(32):
        e(f"v_add_f32 v{vR+i}, v{vR+i}, v{vAcc+i}")
    e("s_branch K1_ad")
    e("K1_a1:")
    for i in range(32):
        e(f"v_add_f32 v{vR+i}, v{vR+i}, v{vAcc+32+i}")
    e("K1_ad:")
    lr, li = vP, vP + 1
    e(f"v_mov_b32 v{vEr}, v{vR}")
    e(f"v_mov_b32 v{vEi}, v{vR+16}")
    for q in range(1, 16):
        cmad(vEr, vEi, lr, li, vR + q, vR + 16 + q, vt0, vt1)
    e(f"v_add_u32 v{vAd}, s{sT2}, v{vHh}")
    e(f"v_lshlrev_b32 v{vAd}, 9, v{vAd}")
    e(f"v_lshl_add_u32 v{vAd}, v{vL31}, 3, v{vAd}")
    e(f"s_lshl_b32 s52, s{sWn}, 8")
    e(f"v_add_u32 v{vAd}, s52, v{vAd}")
    e(f"ds_write_b64 v{vAd}, v[{vEr}:{vEi}] offset:{EB}")
    e("s_waitcnt lgkmcnt(0)")
    e("s_barrier")
    stamp(3)
    e(f"s_cmp_lg_u32 s{sW}, 0")
    e("s_cbranch_scc1 K1_lbdone")
    e(f"v_lshlrev_b32 v{vAd}, 3, v{vLane}")
    for s_ in range(8):
        e(f"ds_read_b64 v[{vES+2*s_}:{vES+2*s_+1}], v{vAd} offset:{EB+s_*512}")
    e("s_waitcnt lgkmcnt(0)")
    for s_ in range(1, 8):
        cmad(vES, vES + 1, vQ, vQ + 1, vES + 2 * s_, vES + 2 * s_ + 1, vt0, vt1)
    e(f"s_lshl_b32 s52, s{sC}, 4")
    e(f"s_add_u32 s52, s52, s{sG}")
    e("s_lshl_b32 s52, s52, 9")
    e(f"s_add_u32 s52, s52, {AGG}")
    e(f"v_add_u32 v{vt0}, s52, v{vAd}")
    e(f"buffer_store_dwordx2 v[{vES}:{vES+1}], v{vt0}, s[{SH}:{SH+3}], 0 offen sc1")
    e(f"v_mov_b32 v{vHr}, 0")
    e(f"v_mov_b32 v{vHi}, 0")
    e(f"s_lshl_b32 s57, 1, s{sC}")
    e("s_sub_u32 s52, s57, 1")
    e("s_mov_b32 s56, 0")
    e("s_waitcnt vmcnt(1)")
    e("K1_poll:")
    e(f"v_readlane_b32 s53, v{vFl}, s{sG}")
    e(f"v_and_b32 v{vt0}, s57, v{vFl}")
    e(f"v_cmp_eq_u32 vcc, 0, v{vt0}")
    e("s_and_b32 s53, s53, s52")
    e("s_cmp_eq_u32 s53, s52")
    e("s_cbranch_scc0 K1_pollagain")
    e("s_cmp_eq_u64 vcc, 0")
    e("s_cbranch_scc1 K1_polldone")
    e("K1_pollagain:")
    e(f"buffer_load_dword v{vFl}, v{vFa}, s[{SD}:{SD+3}], 0 offen sc1")
    e("s_add_u32 s56, s56, 1")
    e("s_waitcnt vmcnt(0)")
    e("s_cmp_lt_u32 s56, 0x200000")
    e("s_cbranch_scc1 K1_poll")
    e("K1_polldone:")
    e(f"s_cmp_eq_u32 s{sC}, 0")
    e("s_cbranch_scc1 K1_nogather")
    e(f"s_lshl_b32 s52, s{sG}, 9")
    e(f"s_add_u32 s52, s52, {AGG}")
    e(f"v_add_u32 v{vFl}, s52, v{vAd}")
    e("s_mov_b32 s56, 0")
    e("K1_round:")
    for cp in range(15):
        e(f"s_mov_b32 s53, {cp*8192}")
        e(f"buffer_load_dwordx2 v[{vAcc+2*cp}:{vAcc+2*cp+1}], v{vFl}, s[{SH}:{SH+3}], s53 offen sc1")
    e("s_add_u32 s56, s56, 1")
    e("s_cmp_ge_u32 s56, 0x100000")
    e("s_waitcnt vmcnt(0)")
    e("s_cbranch_scc1 K1_allvalid")
    for cp in range(15):
        e(f"s_cmp_le_u32 s{sC}, {cp}")
        e("s_cbranch_scc1 K1_allvalid")
        e(f"v_cmp_eq_u32 vcc, -1, v{vAcc+2*cp}")
        e(f"v_cmp_eq_u32 s[54:55], -1, v{vAcc+2*cp+1}")
        e("s_or_b64 s[54:55], s[54:55], vcc")
        e("s_cbranch_scc1 K1_round")
    e("K1_allvalid:")
    for cp in range(15):
        e(f"s_cmp_le_u32 s{sC}, {cp}")
        e("s_cbranch_scc1 K1_nogather")
        cmad(vHr, vHi, vQ + 2, vQ + 3, vAcc + 2 * cp, vAcc + 2 * cp + 1, vt0, vt1)
    e("K1_nogather:")
    e(f"ds_write_b64 v{vAd}, v[{vHr}:{vHi}] offset:{HB}")
    e("s_waitcnt lgkmcnt(0)")
    e("K1_lbdone:")
    e("s_barrier")
    stamp(4)
    e(f"v_lshlrev_b32 v{vAd}, 3, v{vL31}")
    e(f"s_lshl_b32 s52, s{sWn}, 8")
    e(f"v_add_u32 v{vAd}, s52, v{vAd}")
    e(f"ds_read_b64 v[{vHr}:{vHi}], v{vAd} offset:{HB}")
    for s_ in range(6):
        e(f"ds_read_b64 v[{vES+2*s_}:{vES+2*s_+1}], v{vAd} offset:{EB+s_*512}")
    e(f"s_lshl_b32 s52, s{sT2}, 9")
    e(f"v_add_u32 v{vt0}, s52, v{vAd}")
    e(f"ds_read_b64 v[{vE2}:{vE2+1}], v{vt0} offset:{EB}")
    e("s_waitcnt lgkmcnt(0)")
    for s_ in range(6):
        e(f"s_cmp_le_u32 s{sT2}, {s_}")
        e("s_cbranch_scc1 K1_cdone")
        cmad(vHr, vHi, vP + 2, vP + 3, vES + 2 * s_, vES + 2 * s_ + 1, vt0, vt1)
    e("K1_cdone:")
    e("s_mov_b32 s54, 0")
    e("s_mov_b32 s55, -1")
    e("s_mov_b64 exec, s[54:55]")
    cmad(vHr, vHi, vP + 2, vP + 3, vE2, vE2 + 1, vt0, vt1)
    e("s_mov_b64 exec, -1")
    s2r, s2i = vP + 4, vP + 5
    for q in range(16):
        cmad(vHr, vHi, lr, li, vR + q, vR + 16 + q, vt0, vt1)
        e(f"v_mul_f32 v{vAcc+q}, v{s2r}, v{vHr}")
        e(f"v_fma_f32 v{vAcc+q}, -v{s2i}, v{vHi}, v{vAcc+q}")
        e(f"v_mul_f32 v{vAcc+16+q}, -v{s2r}, v{vHi}")
        e(f"v_fma_f32 v{vAcc+16+q}, -v{s2i}, v{vHr}, v{vAcc+16+q}")
    vPk = vAcc + 32
    for p in range(16):
        e(f"v_cvt_pk_bf16_f32 v{vPk+p}, v{vAcc+2*p}, v{vAcc+2*p+1}")
    e(f"s_lshl_b32 s52, s{sW}, 12")
    e(f"s_add_u32 s52, s52, {TB}")
    e(f"v_lshlrev_b32 v{vAd}, 6, v{vL31}")
    e(f"v_lshl_add_u32 v{vAd}, v{vHh}, 5, v{vAd}")
    e(f"v_add_u32 v{vAd}, s52, v{vAd}")
    e(f"ds_write_b128 v{vAd}, v[{vPk}:{vPk+3}]")
    e(f"ds_write_b128 v{vAd}, v[{vPk+4}:{vPk+7}] offset:16")
    e(f"ds_write_b128 v{vAd}, v[{vPk+8}:{vPk+11}] offset:2048")
    e(f"ds_write_b128 v{vAd}, v[{vPk+12}:{vPk+15}] offset:2064")
    e(f"v_lshrrev_b32 v{vt0}, 4, v{vLane}")
    e(f"v_lshrrev_b32 v{vt1}, 2, v{vLane}")
    e(f"v_and_b32 v{vt1}, 3, v{vt1}")
    e(f"v_lshl_add_u32 v{vt1}, v{vt0}, 3, v{vt1}")
    e(f"v_lshlrev_b32 v{vt1}, 6, v{vt1}")
    e(f"v_and_b32 v{vAd}, 3, v{vLane}")
    e(f"v_lshl_add_u32 v{vt1}, v{vAd}, 3, v{vt1}")
    e(f"v_add_u32 v{vt1}, s52, v{vt1}")
    e(f"v_and_b32 v{vAd}, 15, v{vLane}")
    e(f"s_lshl_b32 s52, s{sC}, 7")
    e(f"s_lshl_b32 s53, s{sT2}, 4")
    e("s_add_u32 s52, s52, s53")
    e(f"v_add_u32 v{vAd}, s52, v{vAd}")
    e(f"v_lshlrev_b32 v{vAd}, 12, v{vAd}")
    e(f"v_lshl_add_u32 v{vAd}, v{vt0}, 4, v{vAd}")
    e(f"s_lshl_b32 s52, s{sG}, 7")
    e(f"s_lshl_b32 s53, s{sWn}, 6")
    e("s_add_u32 s52, s52, s53")
    e(f"v_add_u32 v{vAd}, s52, v{vAd}")
    e(f"v_add_u32 v{vt0}, {16*4096}, v{vAd}")
    e("s_waitcnt lgkmcnt(0)")
    vO = vR
    for part in range(2):
        for th in range(2):
            b = vO + (part * 2 + th) * 4
            for u in range(2):
                e(f"ds_read_b64_tr_b16 v[{b+2*u}:{b+2*u+1}], v{vt1} offset:{part*2048 + u*256 + th*32}")
    e("s_waitcnt lgkmcnt(0)")
    for part in range(2):
        for th in range(2):
            b = vO + (part * 2 + th) * 4
            e(f"buffer_store_dwordx4 v[{b}:{b+3}], v{vAd if th == 0 else vt0}, s[{SH}:{SH+3}], 0 offen offset:{part*2048} sc1")
    stamp(5)
    e(f"v_mov_b32 v{vt0}, s{sHF}")
    e(f"v_mov_b32 v{vt1}, 1")
    e("s_waitcnt vmcnt(0)")
    e("s_mov_b64 exec, 1")
    e(f"buffer_store_dword v{vt1}, v{vt0}, s[{SH}:{SH+3}], 0 offen sc1")
    e("s_mov_b64 exec, -1")
    stamp(10)
    e("s_barrier")
    stamp(11)
    NS = 6; SLOT = 24576; NST = 32; PF = NS - 1
    sWt, sKC = 44, 45
    SC, SO = 20, 24
    vDA = 4; vDB = 5
    vX = 20; vD = 28; vS = 36; vT = 52
    vFA = 64; vFB = 76
    vAcc = 96; vR = 128; vOA = 144
    t0, t1, t2 = vT, vT + 1, vT + 2
    e(f"s_and_b32 s{sWt}, s{sW}, 3")
    e(f"v_lshrrev_b32 v{t0}, 3, v{vLane}")
    e(f"v_and_b32 v{t0}, 3, v{t0}")
    e(f"v_lshl_add_u32 v{t0}, v{vHh}, 4, v{t0}")
    e(f"v_lshrrev_b32 v{t1}, 4, v{vLane}")
    e(f"v_and_b32 v{t2}, 7, v{vLane}")
    e(f"v_xor_b32 v{t1}, v{t1}, v{t2}")
    e(f"s_lshl_b32 s52, s{sKh}, 5")
    e(f"s_lshl_b32 s53, s{sWt}, 2")
    e("s_add_u32 s52, s52, s53")
    e(f"s_lshl_b32 s53, s{sG}, 6")
    e("s_add_u32 s52, s52, s53")
    e(f"v_add_u32 v{vDA}, s52, v{t0}")
    e(f"v_lshlrev_b32 v{vDA}, 11, v{vDA}")
    e(f"s_and_b32 s53, s{sW}, 1")
    e("s_lshl_b32 s53, s53, 2")
    e(f"v_xor_b32 v{t2}, s53, v{t1}")
    e(f"v_lshl_add_u32 v{vDA}, v{t2}, 4, v{vDA}")
    for i in range(2):
        e(f"s_lshl_b32 s52, s{sC}, 7")
        e(f"s_lshl_b32 s53, s{sW}, 4")
        e("s_add_u32 s52, s52, s53")
        e(f"s_add_u32 s52, s52, {8*i}")
        e(f"v_lshrrev_b32 v{vDB+i}, 3, v{vLane}")
        e(f"v_add_u32 v{vDB+i}, s52, v{vDB+i}")
        e(f"v_lshlrev_b32 v{vDB+i}, 12, v{vDB+i}")
        e(f"v_xor_b32 v{t2}, {4*i}, v{t1}")
        e(f"v_lshl_add_u32 v{vDB+i}, v{t2}, 4, v{vDB+i}")
    e(f"s_lshl_b32 s{sM0A}, s{sW}, 10")
    e(f"s_lshl_b32 s{sM0B}, s{sW}, 11")
    e(f"s_add_u32 s{sM0B}, s{sM0B}, 8192")
    srd(SC, 84, 1024 * 1024 * 2)
    def setk2(j):
        e(f"s_add_u32 s{sKC}, s{sG}, {j>>1}")
        e(f"s_and_b32 s{sKC}, s{sKC}, 15")
        e(f"s_lshl_b32 s{sKC}, s{sKC}, 7")
        e(f"s_add_u32 s{sK}, s{sKC}, {(j&1)*2048}")
        e(f"s_mov_b32 s{SC}, s{84 + 2*(j&1)}")
        e(f"s_and_b32 s{SC+1}, s{85 + 2*(j&1)}, 0xffff")
    def dma2(i3, slot_imm=None):
        base = sM0A if i3 == 0 else sM0B
        off = 0 if i3 == 0 else (i3 - 1) * 1024
        if slot_imm is not None:
            e(f"s_add_u32 m0, s{base}, {slot_imm*SLOT + off}")
        else:
            e(f"s_add_u32 s61, s{base}, s{sWr}")
            e(f"s_add_u32 m0, s61, {off}")
        e("s_nop 0")
        if i3 == 0:
            e(f"buffer_load_dwordx4 v{vDA}, s[{SC}:{SC+3}], s{sKC} offen lds")
        else:
            e(f"buffer_load_dwordx4 v{vDB+i3-1}, s[{SH}:{SH+3}], s{sK} offen sc1 lds")
    for st in range(PF):
        setk2(st)
        dma2(0, st)
    srd(SO, 90, 2048 * 1024 * 4)
    e(f"s_lshl_b32 s52, s{sC}, 7")
    e(f"s_lshl_b32 s53, s{sWt}, 5")
    e("s_add_u32 s52, s52, s53")
    e(f"v_add_u32 v{t0}, s52, v{vL31}")
    e(f"s_lshl_b32 s52, s{sG}, 6")
    e(f"s_lshl_b32 s53, s{sKh}, 5")
    e("s_add_u32 s52, s52, s53")
    e(f"v_lshlrev_b32 v{t1}, 4, v{vHh}")
    e(f"v_add_u32 v{t1}, s52, v{t1}")
    e(f"v_lshlrev_b32 v{t2}, 1, v{t1}")
    e(f"global_load_dwordx4 v[{vD}:{vD+3}], v{t2}, s[88:89]")
    e(f"global_load_dwordx4 v[{vD+4}:{vD+7}], v{t2}, s[88:89] offset:16")
    e(f"v_lshl_add_u32 v{t2}, v{t0}, 11, v{t2}")
    e(f"global_load_dwordx4 v[{vX}:{vX+3}], v{t2}, s[4:5]")
    e(f"global_load_dwordx4 v[{vX+4}:{vX+7}], v{t2}, s[4:5] offset:16")
    for st in range(2):
        setk2(st)
        dma2(1, st); dma2(2, st)
    e(f"v_lshlrev_b32 v{vOA}, 2, v{t1}")
    e(f"v_lshl_add_u32 v{vOA}, v{t0}, 12, v{vOA}")
    e(f"v_lshrrev_b32 v{t0}, 1, v{vL31}")
    e(f"v_and_b32 v{t0}, 7, v{t0}")
    e(f"v_xor_b32 v{t0}, v{t0}, v{vHh}")
    e(f"s_lshl_b32 s52, s{sKh}, 2")
    for ks in range(2):
        e(f"s_add_u32 s53, s52, {2*ks}")
        e(f"v_xor_b32 v{t1}, s53, v{t0}")
        e(f"v_lshlrev_b32 v{t1}, 4, v{t1}")
        e(f"v_lshl_add_u32 v{vRA+ks}, v{vL31}, 7, v{t1}")
        e(f"s_lshl_b32 s53, s{sWt}, 12")
        e("s_add_u32 s53, s53, 8192")
        e(f"v_add_u32 v{vRB+ks}, s53, v{vRA+ks}")
    for i in range(32):
        e(f"v_mov_b32 v{vAcc+i}, 0")
    e("s_waitcnt vmcnt(4)")
    for p in range(8):
        e(f"v_lshlrev_b32 v{t0}, 16, v{vX+p}")
        e(f"v_and_b32 v{t1}, 0xffff0000, v{vX+p}")
        e(f"v_lshlrev_b32 v{t2}, 16, v{vD+p}")
        e(f"v_and_b32 v{t2+1}, 0xffff0000, v{vD+p}")
        e(f"v_mul_f32 v{t0}, v{t0}, v{t2}")
        e(f"v_mul_f32 v{t1}, v{t1}, v{t2+1}")
        e(f"v_cvt_pk_bf16_f32 v{t0}, v{t0}, v{t1}")
        e(f"v_lshlrev_b32 v{vS+2*p}, 16, v{t0}")
        e(f"v_and_b32 v{vS+2*p+1}, 0xffff0000, v{t0}")
    stamp(12)
    e(f"s_cmp_lg_u32 s{sW}, 0")
    e("s_cbranch_scc1 K2_polldone")
    e(f"v_lshlrev_b32 v{vT+4}, 3, v{vLane}")
    e(f"s_lshl_b32 s52, s{sC}, 9")
    e(f"s_add_u32 s52, s52, {HFL}")
    e(f"v_add_u32 v{vT+5}, s52, v{vT+4}")
    e("s_mov_b32 s56, 0")
    e("K2_poll:")
    e(f"buffer_load_dwordx2 v[{vT+6}:{vT+7}], v{vT+5}, s[{SH}:{SH+3}], 0 offen sc1")
    e("s_add_u32 s56, s56, 1")
    e("s_waitcnt vmcnt(0)")
    e(f"v_cmp_ne_u32 vcc, 1, v{vT+6}")
    e(f"v_cmp_ne_u32 s[54:55], 1, v{vT+7}")
    e("s_or_b64 s[54:55], s[54:55], vcc")
    e("s_cbranch_scc0 K2_pollok")
    e("s_cmp_lt_u32 s56, 0x200000")
    e("s_cbranch_scc1 K2_poll")
    e("K2_pollok:")
    e("s_mov_b64 exec, -1")
    e("K2_polldone:")
    e("s_barrier")
    stamp(6)
    for st in range(2, PF):
        setk2(st)
        dma2(1, st); dma2(2, st)
    def rd2(va, vb, fb):
        r = []
        for mt in range(2):
            r.append(f"ds_read_b128 v[{fb+mt*4}:{fb+mt*4+3}], v{va} offset:{mt*4096}")
        r.append(f"ds_read_b128 v[{fb+8}:{fb+11}], v{vb}")
        return r
    def mf2(fb):
        r = []
        for mt in range(2):
            a = vAcc + mt * 16
            r.append(f"v_mfma_f32_32x32x16_bf16 v[{a}:{a+15}], v[{fb+mt*4}:{fb+mt*4+3}], v[{fb+8}:{fb+11}], v[{a}:{a+15}]")
        return r
    e(f"s_waitcnt vmcnt({2*(PF-2)})")
    e("s_barrier")
    stamp(7)
    for s_ in rd2(vRA, vRB, vFA): e(s_)
    e(f"s_mov_b32 s{sI}, 0")
    e(f"s_mov_b32 s{sRd}, 0")
    e(f"s_mov_b32 s{sRdN}, {SLOT}")
    e(f"s_mov_b32 s{sWr}, {PF*SLOT}")
    def book2(nxt_pf):
        e(f"s_mov_b32 s{sWr}, s{sRd}")
        e(f"s_mov_b32 s{sRd}, s{sRdN}")
        e(f"s_add_u32 s{sRdN}, s{sRdN}, {SLOT}")
        e(f"s_cmp_ge_u32 s{sRdN}, {NS*SLOT}")
        e(f"s_cselect_b32 s{sRdN}, 0, s{sRdN}")
        e(f"s_add_u32 s{sI}, s{sI}, 1")
        e(f"v_add_u32 v{vA1}, s{sRd}, v{vRA+1}")
        e(f"v_add_u32 v{vB1}, s{sRd}, v{vRB+1}")
        e(f"v_add_u32 v{vA0}, s{sRdN}, v{vRA}")
        e(f"v_add_u32 v{vB0}, s{sRdN}, v{vRB}")
        if nxt_pf:
            e(f"s_add_u32 s52, s{sI}, {PF}")
            e("s_lshr_b32 s53, s52, 1")
            e(f"s_add_u32 s{sKC}, s{sG}, s53")
            e(f"s_and_b32 s{sKC}, s{sKC}, 15")
            e(f"s_lshl_b32 s{sKC}, s{sKC}, 7")
            e("s_and_b32 s52, s52, 1")
            e("s_lshl_b32 s53, s52, 11")
            e(f"s_add_u32 s{sK}, s{sKC}, s53")
            e("s_cmp_eq_u32 s52, 0")
            e(f"s_cselect_b32 s{SC}, s84, s86")
            e(f"s_cselect_b32 s53, s85, s87")
            e(f"s_and_b32 s{SC+1}, s53, 0xffff")
    def body2(with_dma, wait):
        rB = rd2(vA1, vB1, vFB); mA = mf2(vFA)
        e(mA[0])
        for s_ in rB: e(s_)
        if with_dma: dma2(0)
        e(mA[1])
        for s_ in rd2(vA0, vB0, vFA): e(s_)
        if with_dma: dma2(1)
        e("s_waitcnt lgkmcnt(3)")
        mB = mf2(vFB)
        e(mB[0])
        if with_dma: dma2(2)
        book2(with_dma)
        e(mB[1])
        e(wait)
    e(f"v_add_u32 v{vA1}, s{sRd}, v{vRA+1}")
    e(f"v_add_u32 v{vB1}, s{sRd}, v{vRB+1}")
    e(f"v_add_u32 v{vA0}, s{sRdN}, v{vRA}")
    e(f"v_add_u32 v{vB0}, s{sRdN}, v{vRB}")
    setk2(PF)
    e("s_waitcnt lgkmcnt(0)")
    body2(True, "s_waitcnt vmcnt(7) lgkmcnt(0)")
    e("s_barrier")
    body2(True, "s_waitcnt vmcnt(8) lgkmcnt(0)")
    e("s_barrier")
    e("K2_loop:")
    body2(True, f"s_waitcnt vmcnt({3*(PF-2)}) lgkmcnt(0)")
    e(f"s_cmp_lt_u32 s{sI}, {NST-PF}")
    e("s_barrier")
    e("s_cbranch_scc1 K2_loop")
    for j in range(PF):
        n = 3 * (PF - 3 - j)
        body2(False, f"s_waitcnt vmcnt({n}) lgkmcnt(0)" if n >= 0 else "s_waitcnt lgkmcnt(0)")
        e("s_barrier")
    stamp(8)
    vXW, vXR = vT, vT + 1
    e(f"v_lshlrev_b32 v{vXW}, 4, v{vLane}")
    e(f"s_lshl_b32 s52, s{sW}, 12")
    e(f"s_xor_b32 s53, s52, {4<<12}")
    e(f"v_add_u32 v{vXR}, s53, v{vXW}")
    e(f"v_add_u32 v{vXW}, s52, v{vXW}")
    e("s_nop 7")
    e("s_nop 3")
    e(f"s_cmp_eq_u32 s{sKh}, 0")
    e("s_cbranch_scc0 K2_w1")
    for i in range(4):
        e(f"ds_write_b128 v{vXW}, v[{vAcc+16+i*4}:{vAcc+16+i*4+3}] offset:{i*1024}")
    for i in range(16):
        e(f"v_add_f32 v{vS+i}, v{vS+i}, v{vAcc+i}")
    e("s_branch K2_wd")
    e("K2_w1:")
    for i in range(4):
        e(f"ds_write_b128 v{vXW}, v[{vAcc+i*4}:{vAcc+i*4+3}] offset:{i*1024}")
    for i in range(16):
        e(f"v_add_f32 v{vS+i}, v{vS+i}, v{vAcc+16+i}")
    e("K2_wd:")
    e("s_waitcnt lgkmcnt(0)")
    e("s_barrier")
    for i in range(4):
        e(f"ds_read_b128 v[{vR+i*4}:{vR+i*4+3}], v{vXR} offset:{i*1024}")
    e("s_waitcnt lgkmcnt(0)")
    for i in range(16):
        e(f"v_add_f32 v{vR+i}, v{vR+i}, v{vS+i}")
    for i in range(4):
        e(f"buffer_store_dwordx4 v[{vR+i*4}:{vR+i*4+3}], v{vOA}, s[{SO}:{SO+3}], 0 offen offset:{i*16}")
    stamp(9)
    if STAMP:
        e(f"s_cmp_lg_u32 s{sW}, 0")
        e(f"s_cbranch_scc1 KF_done")
        e("s_mov_b64 exec, 1")
        e(f"s_lshl_b32 s62, s2, 6")
        e(f"s_add_u32 s62, s62, {STB}")
        e(f"v_mov_b32 v{vT}, s62")
        e(f"v_mov_b32 v{vT+2}, 128")
        for i in range(13):
            e(f"v_mov_b32 v{vT+1}, s{70+i}")
            e(f"buffer_store_dword v{vT+1}, v{vT}, s[{SH}:{SH+3}], 0 offen offset:{4*i}")
            e("s_cmp_lg_u32 s2, 100")
            e(f"s_cbranch_scc1 SK{i}")
            e(f"buffer_store_dword v{vT+1}, v{vT+2}, s[{SD}:{SD+3}], 0 offen offset:{4*i}")
            e(f"SK{i}:")
    e("KF_done:")
    e("s_endpgm")

gen()
out = HDR + "\n".join(L) + f"""
.section .rodata,"a"
.p2align 6
.amdhsa_kernel {KN}
  .amdhsa_next_free_vgpr 232
  .amdhsa_next_free_sgpr 96
  .amdhsa_accum_offset 232
  .amdhsa_group_segment_fixed_size 0
  .amdhsa_kernarg_size 96
  .amdhsa_user_sgpr_count 2
  .amdhsa_user_sgpr_kernarg_segment_ptr 1
  .amdhsa_system_sgpr_workgroup_id_x 1
  .amdhsa_float_denorm_mode_32 3
.end_amdhsa_kernel
"""
path = sys.argv[1] if len(sys.argv) > 1 else "standalone__ssm_conv_s5__prompt.s"
open(path, "w").write(out)
print("wrote", path, len(out), "bytes")
```

```python
import sys, os, struct

L = []
STAMP = os.environ.get("STAMP", "0") == "1"
ROT = int(os.environ.get("ROT", "15"))
def e(s=""):
    L.append("    " + s if s and not s.endswith(":") and not s.startswith(".") and not s.startswith(";") else s)

LOG2E = 0x3fb8aa3b
INV2PI = 0x3e22f983
AGG = 8 * 1024 * 1024
HFL = AGG + 131072
STB = HFL + 8192
KN = "standalone__ssm_conv_s5__prompt_kernel"

HDR = """; Kernarg layout (96 bytes): x, Lambda_re, Lambda_im, B_re, B_im, C_re, C_im, log_dt, Dskip, out, debug, ws
; @launch grid=(256,1,1) block=(512,1,1) lds=163840
.amdgcn_target "amdgcn-amd-amdhsa--gfx950"
.text
"""

def srd(d, base, size):
    e(f"s_mov_b32 s{d}, s{base}")
    e(f"s_and_b32 s{d+1}, s{base+1}, 0xffff")
    e(f"s_mov_b32 s{d+2}, {size}")
    e(f"s_mov_b32 s{d+3}, 0x00020000")

def stamp(n):
    if STAMP:
        e(f"s_memrealtime s[62:63]")
        e("s_waitcnt lgkmcnt(0)")
        e(f"s_mov_b32 s{70+n}, s62")

def lam_params(vch, out, tmp, sLre, sLim, sLdt, want):
    e(f"v_lshlrev_b32 v{tmp+3}, 1, v{vch}")
    e(f"global_load_ushort v{tmp}, v{tmp+3}, s[{sLre}:{sLre+1}]")
    e(f"global_load_ushort v{tmp+1}, v{tmp+3}, s[{sLim}:{sLim+1}]")
    e(f"global_load_ushort v{tmp+2}, v{tmp+3}, s[{sLdt}:{sLdt+1}]")
    def compute():
        lre, lim, ldt = tmp, tmp + 1, tmp + 2
        a, b, c, d, f, g = tmp + 3, tmp + 4, tmp + 5, tmp + 6, tmp + 7, tmp + 8
        e(f"v_lshlrev_b32 v{lre}, 16, v{lre}")
        e(f"v_lshlrev_b32 v{lim}, 16, v{lim}")
        e(f"v_lshlrev_b32 v{ldt}, 16, v{ldt}")
        e(f"v_mul_f32 v{a}, {LOG2E:#x}, v{ldt}")
        e(f"v_exp_f32 v{a}, v{a}")
        e("s_nop 0")
        e(f"v_cvt_pk_bf16_f32 v{a}, v{a}, v{a}")
        e(f"v_lshlrev_b32 v{a}, 16, v{a}")
        e(f"v_mul_f32 v{b}, v{a}, v{lre}")
        e(f"v_mul_f32 v{c}, v{a}, v{lim}")
        e(f"v_mul_f32 v{b}, {LOG2E:#x}, v{b}")
        e(f"v_mul_f32 v{c}, {INV2PI:#x}, v{c}")
        for nm, n in (("l1", 1.0), ("l16", 16.0), ("l128", 128.0)):
            if nm + "r" not in want and not (nm == "l1" and "s2r" in want):
                continue
            rr = out.get(nm + "r", tmp + 9); ii = out.get(nm + "i", tmp + 10)
            nb = struct.unpack("<I", struct.pack("<f", n))[0]
            e(f"v_mul_f32 v{d}, {nb:#x}, v{b}")
            e(f"v_mul_f32 v{f}, {nb:#x}, v{c}")
            e(f"v_exp_f32 v{d}, v{d}")
            e(f"v_fract_f32 v{f}, v{f}")
            e(f"v_cos_f32 v{g}, v{f}")
            e(f"v_sin_f32 v{f}, v{f}")
            e("s_nop 0")
            e(f"v_mul_f32 v{rr}, v{d}, v{g}")
            e(f"v_mul_f32 v{ii}, v{d}, v{f}")
            if nm == "l1" and "s2r" in want:
                e(f"v_add_f32 v{d}, -1.0, v{rr}")
                e(f"v_mul_f32 v{f}, v{lre}, v{lre}")
                e(f"v_fma_f32 v{f}, v{lim}, v{lim}, v{f}")
                e(f"v_rcp_f32 v{f}, v{f}")
                e(f"v_mul_f32 v{g}, v{d}, v{lre}")
                e(f"v_fma_f32 v{g}, v{ii}, v{lim}, v{g}")
                e(f"v_mul_f32 v{a}, v{ii}, v{lre}")
                e(f"v_fma_f32 v{a}, -v{d}, v{lim}, v{a}")
                e(f"v_add_f32 v{f}, v{f}, v{f}")
                e(f"v_mul_f32 v{out['s2r']}, v{g}, v{f}")
                e(f"v_mul_f32 v{out['s2i']}, v{a}, v{f}")
    return compute

def cmad(hr, hi, lr, li, br, bi, t0, t1):
    e(f"v_fma_f32 v{t0}, v{lr}, v{hr}, v{br}")
    e(f"v_fma_f32 v{t1}, v{lr}, v{hi}, v{bi}")
    e(f"v_fma_f32 v{t0}, -v{li}, v{hi}, v{t0}")
    e(f"v_fma_f32 v{hi}, v{li}, v{hr}, v{t1}")
    e(f"v_mov_b32 v{hr}, v{t0}")

def gen():
    e(f".globl {KN}")
    e(".p2align 8")
    e(f".type {KN},@function")
    e(f"{KN}:")
    e("s_cmp_ge_u32 s2, 256")
    e("s_cbranch_scc1 KF_done")
    e("s_load_dwordx4 s[4:7], s[0:1], 0")
    e("s_load_dwordx4 s[8:11], s[0:1], 16")
    e("s_load_dwordx2 s[12:13], s[0:1], 32")
    e("s_load_dwordx2 s[14:15], s[0:1], 56")
    e("s_load_dwordx4 s[16:19], s[0:1], 80")
    e("s_load_dwordx4 s[84:87], s[0:1], 40")
    e("s_load_dwordx4 s[88:91], s[0:1], 64")
    NS = 5; SLOT = 32768; NST = 16; PF = 4
    sC, sG, sW, sKh, sWm, sWn, sT2, sK, sM0A, sM0B = 40, 41, 42, 43, 44, 45, 46, 47, 48, 49
    sI, sRd, sRdN, sWr = 36, 37, 38, 39
    sHF = 58
    SX, SB, SH, SD = 20, 24, 28, 32
    e("s_and_b32 s3, s2, 7")
    e("s_lshr_b32 s60, s2, 3")
    e("s_lshr_b32 s52, s3, 1")
    e("s_lshl_b32 s52, s52, 2")
    e("s_lshr_b32 s53, s60, 3")
    e(f"s_add_u32 s{sC}, s52, s53")
    e("s_and_b32 s52, s3, 1")
    e("s_lshl_b32 s52, s52, 3")
    e("s_and_b32 s53, s60, 7")
    e(f"s_add_u32 s{sG}, s52, s53")
    e(f"s_and_b32 s60, s60, {ROT}")
    vLane = 1; vL31 = 2; vHh = 3
    vDA = 4; vDB = 6
    vRA = 8; vRB = 10
    vA0, vB0, vA1, vB1 = 12, 13, 14, 15
    vP = 20; vQ = 26
    vT = 30; vT2 = 48
    vFA = 64; vFB = 80
    vAcc = 96
    vR = 160
    vE = 192
    e(f"v_and_b32 v{vLane}, 63, v0")
    e(f"v_lshrrev_b32 v{vT}, 6, v0")
    e("s_nop 0")
    e(f"v_readfirstlane_b32 s{sW}, v{vT}")
    e(f"v_and_b32 v{vL31}, 31, v0")
    e(f"v_lshrrev_b32 v{vHh}, 5, v{vLane}")
    t0, t1, t2 = vE, vE + 1, vE + 2
    e(f"v_lshrrev_b32 v{t0}, 3, v{vLane}")
    e(f"v_and_b32 v{t0}, 3, v{t0}")
    e(f"v_lshl_add_u32 v{t0}, v{vHh}, 4, v{t0}")
    e(f"v_lshrrev_b32 v{t1}, 4, v{vLane}")
    e(f"v_and_b32 v{t2}, 7, v{vLane}")
    e(f"v_xor_b32 v{t1}, v{t1}, v{t2}")
    e(f"s_lshr_b32 s{sKh}, s{sW}, 2")
    e(f"s_lshr_b32 s{sWm}, s{sW}, 1")
    e(f"s_and_b32 s{sWm}, s{sWm}, 1")
    e(f"s_and_b32 s{sWn}, s{sW}, 1")
    e(f"s_lshl_b32 s{sT2}, s{sWm}, 1")
    e(f"s_add_u32 s{sT2}, s{sT2}, s{sKh}")
    e(f"s_lshl_b32 s{sT2}, s{sT2}, 1")
    for i in range(2):
        e(f"s_lshl_b32 s52, s{sW}, 1")
        e(f"s_add_u32 s52, s52, {i}")
        e("s_lshr_b32 s53, s52, 2")
        e("s_lshl_b32 s53, s53, 5")
        e("s_and_b32 s52, s52, 3")
        e("s_lshl_b32 s52, s52, 2")
        e("s_add_u32 s52, s52, s53")
        e(f"s_lshl_b32 s53, s{sC}, 7")
        e("s_add_u32 s52, s52, s53")
        e(f"v_add_u32 v{vDA+i}, s52, v{t0}")
        e(f"v_lshlrev_b32 v{vDA+i}, 11, v{vDA+i}")
        e(f"v_xor_b32 v{t2}, {4*i}, v{t1}")
        e(f"v_lshl_add_u32 v{vDA+i}, v{t2}, 4, v{vDA+i}")
        e(f"s_lshl_b32 s52, s{sG}, 6")
        e(f"s_lshl_b32 s53, s{sKh}, 5")
        e("s_add_u32 s52, s52, s53")
        e(f"s_lshl_b32 s53, s{sWn}, 4")
        e("s_add_u32 s52, s52, s53")
        e(f"s_add_u32 s52, s52, {8*i}")
        e(f"v_lshrrev_b32 v{vDB+i}, 3, v{vLane}")
        e(f"v_add_u32 v{vDB+i}, s52, v{vDB+i}")
        e(f"v_lshlrev_b32 v{vDB+i}, 11, v{vDB+i}")
        e(f"v_lshl_add_u32 v{vDB+i}, v{t2}, 4, v{vDB+i}")
    e(f"s_lshl_b32 s{sM0A}, s{sW}, 11")
    e(f"s_add_u32 s{sM0B}, s{sM0A}, 16384")
    e("s_waitcnt lgkmcnt(0)")
    stamp(0)
    srd(SX, 4, 2048 * 1024 * 2)
    e(f"s_cmp_eq_u32 s{sWm}, 0")
    e("s_cselect_b32 s52, s10, s12")
    e("s_cselect_b32 s53, s11, s13")
    srd(SB, 52, 1024 * 1024 * 2)
    def setk_imm(st):
        e(f"s_add_u32 s{sK}, s60, {st}")
        e(f"s_and_b32 s{sK}, s{sK}, 15")
        e(f"s_lshl_b32 s{sK}, s{sK}, 7")
    def dma(i4, slot_imm=None):
        base = sM0A if i4 < 2 else sM0B
        off = (i4 % 2) * 1024
        if slot_imm is not None:
            e(f"s_add_u32 m0, s{base}, {slot_imm*SLOT + off}")
        else:
            e(f"s_add_u32 s61, s{base}, s{sWr}")
            e(f"s_add_u32 m0, s61, {off}")
        e("s_nop 0")
        if i4 < 2:
            e(f"buffer_load_dwordx4 v{vDA+i4}, s[{SX}:{SX+3}], s{sK} offen lds")
        else:
            e(f"buffer_load_dwordx4 v{vDB+i4-2}, s[{SB}:{SB+3}], s{sK} offen lds")
    e(f"s_lshl_b32 s52, s{sG}, 6")
    e(f"s_lshl_b32 s53, s{sWn}, 5")
    e("s_add_u32 s53, s53, s52")
    e(f"v_add_u32 v{vT+12}, s53, v{vL31}")
    e(f"v_add_u32 v{vT2+12}, s52, v{vLane}")
    cp1 = lam_params(vT + 12, dict(l1r=vP, l1i=vP+1, l16r=vP+2, l16i=vP+3, s2r=vP+4, s2i=vP+5), vT, 6, 8, 14,
                     {"l1r", "l16r", "s2r"})
    cp2 = lam_params(vT2 + 12, dict(l16r=vQ, l16i=vQ+1, l128r=vQ+2, l128i=vQ+3), vT2, 6, 8, 14, {"l16r", "l128r"})
    for st in range(PF):
        setk_imm(st)
        for i4 in range(4):
            dma(i4, st)
    srd(SH, 18, STB + (65536 if STAMP else 0))
    srd(SD, 16, 256)
    e(f"s_lshl_b32 s52, s{sC}, 4")
    e(f"s_add_u32 s54, s52, s{sG}")
    e("s_lshl_b32 s52, s54, 9")
    e(f"s_add_u32 s52, s52, {AGG}")
    e(f"s_lshl_b32 s53, s{sW}, 6")
    e("s_add_u32 s52, s52, s53")
    e(f"v_lshlrev_b32 v{vE+3}, 2, v{vLane}")
    e(f"v_add_u32 v{vE+3}, s52, v{vE+3}")
    e(f"v_mov_b32 v{vE+4}, -1")
    e("s_lshl_b32 s52, s54, 3")
    e(f"s_add_u32 s52, s52, s{sW}")
    e("s_lshl_b32 s52, s52, 2")
    e(f"s_add_u32 s{sHF}, s52, {HFL}")
    e("s_mov_b64 exec, 0x10000")
    e(f"v_mov_b32 v{vE+3}, s{sHF}")
    e("s_mov_b64 exec, 0x1ffff")
    e(f"buffer_store_dword v{vE+4}, v{vE+3}, s[{SH}:{SH+3}], 0 offen sc1")
    e("s_mov_b64 exec, -1")
    e(f"v_lshrrev_b32 v{t0}, 1, v{vL31}")
    e(f"v_and_b32 v{t0}, 7, v{t0}")
    e(f"v_xor_b32 v{t0}, v{t0}, v{vHh}")
    e(f"s_lshl_b32 s52, s{sKh}, 2")
    for ks in range(2):
        e(f"s_add_u32 s53, s52, {2*ks}")
        e(f"v_xor_b32 v{t1}, s53, v{t0}")
        e(f"v_lshlrev_b32 v{t1}, 4, v{t1}")
        e(f"v_lshl_add_u32 v{t1}, v{vL31}, 7, v{t1}")
        e(f"s_lshl_b32 s53, s{sWm}, 13")
        e(f"v_add_u32 v{vRA+ks}, s53, v{t1}")
        e(f"s_lshl_b32 s53, s{sWn}, 13")
        e("s_add_u32 s53, s53, 16384")
        e(f"v_add_u32 v{vRB+ks}, s53, v{t1}")
    for i in range(64):
        e(f"v_mov_b32 v{vAcc+i}, 0")
    e("s_waitcnt vmcnt(17)")
    cp1(); cp2()
    e("s_waitcnt vmcnt(9)")
    def rd(va, vb, fb):
        r = []
        for mt in range(2):
            r.append(f"ds_read_b128 v[{fb+mt*4}:{fb+mt*4+3}], v{va} offset:{mt*4096}")
        for nt in range(2):
            r.append(f"ds_read_b128 v[{fb+8+nt*4}:{fb+8+nt*4+3}], v{vb} offset:{nt*4096}")
        return r
    def mf(fb):
        r = []
        for mt in range(2):
            for nt in range(2):
                a = vAcc + (mt * 2 + nt) * 16
                r.append(f"v_mfma_f32_32x32x16_bf16 v[{a}:{a+15}], v[{fb+mt*4}:{fb+mt*4+3}], v[{fb+8+nt*4}:{fb+8+nt*4+3}], v[{a}:{a+15}]")
        return r
    e("s_barrier")
    stamp(1)
    for s_ in rd(vRA, vRB, vFA): e(s_)
    e(f"s_mov_b32 s{sI}, 0")
    e(f"s_mov_b32 s{sRd}, 0")
    e(f"s_mov_b32 s{sRdN}, {SLOT}")
    e(f"s_mov_b32 s{sWr}, {PF*SLOT}")
    def book(nxt_pf):
        e(f"s_mov_b32 s{sWr}, s{sRd}")
        e(f"s_mov_b32 s{sRd}, s{sRdN}")
        e(f"s_add_u32 s{sRdN}, s{sRdN}, {SLOT}")
        e(f"s_cmp_ge_u32 s{sRdN}, {NS*SLOT}")
        e(f"s_cselect_b32 s{sRdN}, 0, s{sRdN}")
        e(f"s_add_u32 s{sI}, s{sI}, 1")
        e(f"v_add_u32 v{vA1}, s{sRd}, v{vRA+1}")
        e(f"v_add_u32 v{vB1}, s{sRd}, v{vRB+1}")
        e(f"v_add_u32 v{vA0}, s{sRdN}, v{vRA}")
        e(f"v_add_u32 v{vB0}, s{sRdN}, v{vRB}")
        if nxt_pf:
            e(f"s_add_u32 s{sK}, s{sK}, 128")
            e(f"s_and_b32 s{sK}, s{sK}, 2047")
    def body(with_dma, wait):
        rB = rd(vA1, vB1, vFB); mA = mf(vFA)
        e(mA[0]); e(rB[0]); e(rB[1])
        e(mA[1]); e(rB[2]); e(rB[3])
        if with_dma: dma(0)
        e(mA[2])
        if with_dma: dma(1)
        e(mA[3])
        for s_ in rd(vA0, vB0, vFA): e(s_)
        e("s_waitcnt lgkmcnt(4)")
        mB = mf(vFB)
        e(mB[0])
        if with_dma: dma(2)
        e(mB[1])
        if with_dma: dma(3)
        e(mB[2])
        book(with_dma)
        e(mB[3])
        e(wait)
    e(f"v_add_u32 v{vA1}, s{sRd}, v{vRA+1}")
    e(f"v_add_u32 v{vB1}, s{sRd}, v{vRB+1}")
    e(f"v_add_u32 v{vA0}, s{sRdN}, v{vRA}")
    e(f"v_add_u32 v{vB0}, s{sRdN}, v{vRB}")
    setk_imm(PF)
    e("s_waitcnt lgkmcnt(0)")
    for _ in range(2):
        body(True, "s_waitcnt vmcnt(8) lgkmcnt(0)")
        e("s_barrier")
    e(f"s_lshl_b32 s52, 1, s{sC}")
    e(f"v_mov_b32 v{t0}, s52")
    e(f"s_lshl_b32 s53, s{sG}, 2")
    e(f"v_mov_b32 v{t1}, s53")
    e(f"s_cmp_lg_u32 s{sW}, 0")
    e("s_cbranch_scc1 K1_noflag")
    e("s_mov_b64 exec, 1")
    e(f"buffer_atomic_or v{t0}, v{t1}, s[{SD}:{SD+3}], 0 offen sc1")
    e("s_mov_b64 exec, -1")
    e("K1_noflag:")
    e("K1_loop:")
    body(True, "s_waitcnt vmcnt(8) lgkmcnt(0)")
    e(f"s_cmp_lt_u32 s{sI}, {NST-PF}")
    e("s_barrier")
    e("s_cbranch_scc1 K1_loop")
    def warmup():
        e(f"s_cmp_lt_u32 s{sW}, 4")
        e("s_cselect_b32 s54, s84, s86")
        e("s_cselect_b32 s55, s85, s87")
        e(f"s_and_b32 s52, s{sC}, 3")
        e("s_lshl_b32 s52, s52, 4")
        e(f"s_and_b32 s53, s{sW}, 3")
        e("s_lshl_b32 s53, s53, 2")
        e("s_add_u32 s52, s52, s53")
        e(f"s_lshl_b32 s53, s{sG}, 6")
        e("s_add_u32 s52, s52, s53")
        e(f"v_lshrrev_b32 v{t0}, 4, v{vLane}")
        e(f"v_add_u32 v{t0}, s52, v{t0}")
        e(f"v_lshlrev_b32 v{t0}, 11, v{t0}")
        e(f"v_and_b32 v{t1}, 15, v{vLane}")
        e(f"v_lshl_add_u32 v{t0}, v{t1}, 7, v{t0}")
        if os.environ.get("WARM", "1") == "1":
            e(f"global_load_dword v{vE+30}, v{t0}, s[54:55]")
    for wi, wt in enumerate(("s_waitcnt vmcnt(4) lgkmcnt(0)", "s_waitcnt vmcnt(0) lgkmcnt(0)", "s_waitcnt lgkmcnt(0)", "s_waitcnt lgkmcnt(0)")):
        if wi == 2: warmup()
        body(False, wt)
        e("s_barrier")
    stamp(2)
    EB = 0; HB = EB + 4096; XB = 8192; TB = 73728
    vXW = vE; vXR = vE + 1; vFl = vE + 2; vFa = vE + 3; vEr = vE + 4; vEi = vE + 5; vt0 = vE + 6; vt1 = vE + 7
    vES = vE + 8
    vHr = vE + 24; vHi = vE + 25; vE2 = vE + 26
    vAd = vE + 28
    e(f"v_and_b32 v{vFa}, 15, v{vLane}")
    e(f"v_lshlrev_b32 v{vFa}, 2, v{vFa}")
    e(f"buffer_load_dword v{vFl}, v{vFa}, s[{SD}:{SD+3}], 0 offen sc1")
    e(f"v_lshlrev_b32 v{vXW}, 4, v{vLane}")
    e(f"s_lshl_b32 s52, s{sW}, 13")
    e(f"s_xor_b32 s53, s52, {4<<13}")
    e(f"s_add_u32 s52, s52, {XB}")
    e(f"s_add_u32 s53, s53, {XB}")
    e(f"v_add_u32 v{vXR}, s53, v{vXW}")
    e(f"v_add_u32 v{vXW}, s52, v{vXW}")
    e("s_nop 7")
    e(f"s_cmp_eq_u32 s{sKh}, 0")
    e("s_cbranch_scc0 K1_w1")
    for i in range(8):
        e(f"ds_write_b128 v{vXW}, v[{vAcc+32+i*4}:{vAcc+32+i*4+3}] offset:{i*1024}")
    e("s_branch K1_wd")
    e("K1_w1:")
    for i in range(8):
        e(f"ds_write_b128 v{vXW}, v[{vAcc+i*4}:{vAcc+i*4+3}] offset:{i*1024}")
    e("K1_wd:")
    e("s_waitcnt lgkmcnt(0)")
    e("s_barrier")
    for i in range(8):
        e(f"ds_read_b128 v[{vR+i*4}:{vR+i*4+3}], v{vXR} offset:{i*1024}")
    e("s_waitcnt lgkmcnt(0)")
    e(f"s_cmp_eq_u32 s{sKh}, 0")
    e("s_cbranch_scc0 K1_a1")
    for i in range(32):
        e(f"v_add_f32 v{vR+i}, v{vR+i}, v{vAcc+i}")
    e("s_branch K1_ad")
    e("K1_a1:")
    for i in range(32):
        e(f"v_add_f32 v{vR+i}, v{vR+i}, v{vAcc+32+i}")
    e("K1_ad:")
    lr, li = vP, vP + 1
    e(f"v_mov_b32 v{vEr}, v{vR}")
    e(f"v_mov_b32 v{vEi}, v{vR+16}")
    for q in range(1, 16):
        cmad(vEr, vEi, lr, li, vR + q, vR + 16 + q, vt0, vt1)
    e(f"v_add_u32 v{vAd}, s{sT2}, v{vHh}")
    e(f"v_lshlrev_b32 v{vAd}, 9, v{vAd}")
    e(f"v_lshl_add_u32 v{vAd}, v{vL31}, 3, v{vAd}")
    e(f"s_lshl_b32 s52, s{sWn}, 8")
    e(f"v_add_u32 v{vAd}, s52, v{vAd}")
    e(f"ds_write_b64 v{vAd}, v[{vEr}:{vEi}] offset:{EB}")
    e("s_waitcnt lgkmcnt(0)")
    e("s_barrier")
    stamp(3)
    e(f"s_cmp_lg_u32 s{sW}, 0")
    e("s_cbranch_scc1 K1_lbdone")
    e(f"v_lshlrev_b32 v{vAd}, 3, v{vLane}")
    for s_ in range(8):
        e(f"ds_read_b64 v[{vES+2*s_}:{vES+2*s_+1}], v{vAd} offset:{EB+s_*512}")
    e("s_waitcnt lgkmcnt(0)")
    for s_ in range(1, 8):
        cmad(vES, vES + 1, vQ, vQ + 1, vES + 2 * s_, vES + 2 * s_ + 1, vt0, vt1)
    e(f"s_lshl_b32 s52, s{sC}, 4")
    e(f"s_add_u32 s52, s52, s{sG}")
    e("s_lshl_b32 s52, s52, 9")
    e(f"s_add_u32 s52, s52, {AGG}")
    e(f"v_add_u32 v{vt0}, s52, v{vAd}")
    e(f"buffer_store_dwordx2 v[{vES}:{vES+1}], v{vt0}, s[{SH}:{SH+3}], 0 offen sc1")
    e(f"v_mov_b32 v{vHr}, 0")
    e(f"v_mov_b32 v{vHi}, 0")
    e(f"s_lshl_b32 s57, 1, s{sC}")
    e("s_sub_u32 s52, s57, 1")
    e("s_mov_b32 s56, 0")
    e("s_waitcnt vmcnt(1)")
    e("K1_poll:")
    e(f"v_readlane_b32 s53, v{vFl}, s{sG}")
    e(f"v_and_b32 v{vt0}, s57, v{vFl}")
    e(f"v_cmp_eq_u32 vcc, 0, v{vt0}")
    e("s_and_b32 s53, s53, s52")
    e("s_cmp_eq_u32 s53, s52")
    e("s_cbranch_scc0 K1_pollagain")
    e("s_cmp_eq_u64 vcc, 0")
    e("s_cbranch_scc1 K1_polldone")
    e("K1_pollagain:")
    e(f"buffer_load_dword v{vFl}, v{vFa}, s[{SD}:{SD+3}], 0 offen sc1")
    e("s_add_u32 s56, s56, 1")
    e("s_waitcnt vmcnt(0)")
    e("s_cmp_lt_u32 s56, 0x200000")
    e("s_cbranch_scc1 K1_poll")
    e("K1_polldone:")
    e(f"s_cmp_eq_u32 s{sC}, 0")
    e("s_cbranch_scc1 K1_nogather")
    e(f"s_lshl_b32 s52, s{sG}, 9")
    e(f"s_add_u32 s52, s52, {AGG}")
    e(f"v_add_u32 v{vFl}, s52, v{vAd}")
    e("s_mov_b32 s56, 0")
    e("K1_round:")
    for cp in range(15):
        e(f"s_mov_b32 s53, {cp*8192}")
        e(f"buffer_load_dwordx2 v[{vAcc+2*cp}:{vAcc+2*cp+1}], v{vFl}, s[{SH}:{SH+3}], s53 offen sc1")
    e("s_add_u32 s56, s56, 1")
    e("s_cmp_ge_u32 s56, 0x100000")
    e("s_waitcnt vmcnt(0)")
    e("s_cbranch_scc1 K1_allvalid")
    for cp in range(15):
        e(f"s_cmp_le_u32 s{sC}, {cp}")
        e("s_cbranch_scc1 K1_allvalid")
        e(f"v_cmp_eq_u32 vcc, -1, v{vAcc+2*cp}")
        e(f"v_cmp_eq_u32 s[54:55], -1, v{vAcc+2*cp+1}")
        e("s_or_b64 s[54:55], s[54:55], vcc")
        e("s_cbranch_scc1 K1_round")
    e("K1_allvalid:")
    for cp in range(15):
        e(f"s_cmp_le_u32 s{sC}, {cp}")
        e("s_cbranch_scc1 K1_nogather")
        cmad(vHr, vHi, vQ + 2, vQ + 3, vAcc + 2 * cp, vAcc + 2 * cp + 1, vt0, vt1)
    e("K1_nogather:")
    e(f"ds_write_b64 v{vAd}, v[{vHr}:{vHi}] offset:{HB}")
    e("s_waitcnt lgkmcnt(0)")
    e("K1_lbdone:")
    e("s_barrier")
    stamp(4)
    vX = 224; vD = 240; vXO = 223
    e(f"s_lshl_b32 s52, s{sC}, 7")
    e(f"s_lshl_b32 s53, s{sW}, 4")
    e("s_add_u32 s52, s52, s53")
    e(f"v_lshrrev_b32 v{vt0}, 4, v{vLane}")
    e(f"v_add_u32 v{vt0}, s52, v{vt0}")
    e(f"s_lshl_b32 s52, s{sG}, 6")
    e(f"v_and_b32 v{vt1}, 15, v{vLane}")
    e(f"v_lshl_add_u32 v{vt1}, v{vt1}, 2, s52")
    e(f"v_lshlrev_b32 v{vXO}, 2, v{vt1}")
    e(f"v_lshl_add_u32 v{vXO}, v{vt0}, 12, v{vXO}")
    e(f"v_lshlrev_b32 v{vt1}, 1, v{vt1}")
    e(f"global_load_dwordx2 v[{vD}:{vD+1}], v{vt1}, s[88:89]")
    e(f"v_lshl_add_u32 v{vt1}, v{vt0}, 11, v{vt1}")
    for i in range(4):
        e(f"global_load_dwordx2 v[{vX+2*i}:{vX+2*i+1}], v{vt1}, s[4:5]")
        if i < 3: e(f"v_add_u32 v{vt1}, 8192, v{vt1}")
    e(f"v_lshlrev_b32 v{vAd}, 3, v{vL31}")
    e(f"s_lshl_b32 s52, s{sWn}, 8")
    e(f"v_add_u32 v{vAd}, s52, v{vAd}")
    e(f"ds_read_b64 v[{vHr}:{vHi}], v{vAd} offset:{HB}")
    for s_ in range(6):
        e(f"ds_read_b64 v[{vES+2*s_}:{vES+2*s_+1}], v{vAd} offset:{EB+s_*512}")
    e(f"s_lshl_b32 s52, s{sT2}, 9")
    e(f"v_add_u32 v{vt0}, s52, v{vAd}")
    e(f"ds_read_b64 v[{vE2}:{vE2+1}], v{vt0} offset:{EB}")
    e("s_waitcnt lgkmcnt(0)")
    for s_ in range(6):
        e(f"s_cmp_le_u32 s{sT2}, {s_}")
        e("s_cbranch_scc1 K1_cdone")
        cmad(vHr, vHi, vP + 2, vP + 3, vES + 2 * s_, vES + 2 * s_ + 1, vt0, vt1)
    e("K1_cdone:")
    e("s_mov_b32 s54, 0")
    e("s_mov_b32 s55, -1")
    e("s_mov_b64 exec, s[54:55]")
    cmad(vHr, vHi, vP + 2, vP + 3, vE2, vE2 + 1, vt0, vt1)
    e("s_mov_b64 exec, -1")
    s2r, s2i = vP + 4, vP + 5
    for q in range(16):
        cmad(vHr, vHi, lr, li, vR + q, vR + 16 + q, vt0, vt1)
        e(f"v_mul_f32 v{vAcc+q}, v{s2r}, v{vHr}")
        e(f"v_fma_f32 v{vAcc+q}, -v{s2i}, v{vHi}, v{vAcc+q}")
        e(f"v_mul_f32 v{vAcc+16+q}, -v{s2r}, v{vHi}")
        e(f"v_fma_f32 v{vAcc+16+q}, -v{s2i}, v{vHr}, v{vAcc+16+q}")
    vPk = vAcc + 32
    for p in range(16):
        e(f"v_cvt_pk_bf16_f32 v{vPk+p}, v{vAcc+2*p}, v{vAcc+2*p+1}")
    e(f"s_lshl_b32 s52, s{sW}, 12")
    e(f"s_add_u32 s52, s52, {TB}")
    e(f"v_lshlrev_b32 v{vAd}, 6, v{vL31}")
    e(f"v_lshl_add_u32 v{vAd}, v{vHh}, 5, v{vAd}")
    e(f"v_add_u32 v{vAd}, s52, v{vAd}")
    e(f"ds_write_b128 v{vAd}, v[{vPk}:{vPk+3}]")
    e(f"ds_write_b128 v{vAd}, v[{vPk+4}:{vPk+7}] offset:16")
    e(f"ds_write_b128 v{vAd}, v[{vPk+8}:{vPk+11}] offset:2048")
    e(f"ds_write_b128 v{vAd}, v[{vPk+12}:{vPk+15}] offset:2064")
    e(f"v_lshrrev_b32 v{vt0}, 4, v{vLane}")
    e(f"v_lshrrev_b32 v{vt1}, 2, v{vLane}")
    e(f"v_and_b32 v{vt1}, 3, v{vt1}")
    e(f"v_lshl_add_u32 v{vt1}, v{vt0}, 3, v{vt1}")
    e(f"v_lshlrev_b32 v{vt1}, 6, v{vt1}")
    e(f"v_and_b32 v{vAd}, 3, v{vLane}")
    e(f"v_lshl_add_u32 v{vt1}, v{vAd}, 3, v{vt1}")
    e(f"v_add_u32 v{vt1}, s52, v{vt1}")
    e(f"v_and_b32 v{vAd}, 15, v{vLane}")
    e(f"s_lshl_b32 s52, s{sC}, 7")
    e(f"s_lshl_b32 s53, s{sT2}, 4")
    e("s_add_u32 s52, s52, s53")
    e(f"v_add_u32 v{vAd}, s52, v{vAd}")
    e(f"v_lshlrev_b32 v{vAd}, 12, v{vAd}")
    e(f"v_lshl_add_u32 v{vAd}, v{vt0}, 4, v{vAd}")
    e(f"s_lshl_b32 s52, s{sG}, 7")
    e(f"s_lshl_b32 s53, s{sWn}, 6")
    e("s_add_u32 s52, s52, s53")
    e(f"v_add_u32 v{vAd}, s52, v{vAd}")
    e(f"v_add_u32 v{vt0}, {16*4096}, v{vAd}")
    e("s_waitcnt lgkmcnt(0)")
    vO = vR
    for part in range(2):
        for th in range(2):
            b = vO + (part * 2 + th) * 4
            for u in range(2):
                e(f"ds_read_b64_tr_b16 v[{b+2*u}:{b+2*u+1}], v{vt1} offset:{part*2048 + u*256 + th*32}")
    e("s_waitcnt lgkmcnt(0)")
    for part in range(2):
        for th in range(2):
            b = vO + (part * 2 + th) * 4
            e(f"buffer_store_dwordx4 v[{b}:{b+3}], v{vAd if th == 0 else vt0}, s[{SH}:{SH+3}], 0 offen offset:{part*2048} sc1")
    stamp(5)
    NS = 6; SLOT = 24576; NST = 32; PF = NS - 1
    sWt, sKC = 44, 45
    SC, SO = 20, 24
    vFlg = vt0
    e(f"v_mov_b32 v{vt0}, s{sHF}")
    e(f"v_mov_b32 v{vt1}, 1")
    vDA = 4; vDB = 5
    vS = 232; vT = 52
    vFA = 64; vFB = 76
    vAcc = 96; vR = 128; vOA = 144
    t0, t1, t2 = vT, vT + 1, vT + 2
    e(f"s_and_b32 s{sWt}, s{sW}, 3")
    e(f"v_lshrrev_b32 v{t0}, 3, v{vLane}")
    e(f"v_and_b32 v{t0}, 3, v{t0}")
    e(f"v_lshl_add_u32 v{t0}, v{vHh}, 4, v{t0}")
    e(f"v_lshrrev_b32 v{t1}, 4, v{vLane}")
    e(f"v_and_b32 v{t2}, 7, v{vLane}")
    e(f"v_xor_b32 v{t1}, v{t1}, v{t2}")
    e(f"s_lshl_b32 s52, s{sKh}, 5")
    e(f"s_lshl_b32 s53, s{sWt}, 2")
    e("s_add_u32 s52, s52, s53")
    e(f"s_lshl_b32 s53, s{sG}, 6")
    e("s_add_u32 s52, s52, s53")
    e(f"v_add_u32 v{vDA}, s52, v{t0}")
    e(f"v_lshlrev_b32 v{vDA}, 11, v{vDA}")
    e(f"s_and_b32 s53, s{sW}, 1")
    e("s_lshl_b32 s53, s53, 2")
    e(f"v_xor_b32 v{t2}, s53, v{t1}")
    e(f"v_lshl_add_u32 v{vDA}, v{t2}, 4, v{vDA}")
    for i in range(2):
        e(f"s_lshl_b32 s52, s{sC}, 7")
        e(f"s_lshl_b32 s53, s{sW}, 4")
        e("s_add_u32 s52, s52, s53")
        e(f"s_add_u32 s52, s52, {8*i}")
        e(f"v_lshrrev_b32 v{vDB+i}, 3, v{vLane}")
        e(f"v_add_u32 v{vDB+i}, s52, v{vDB+i}")
        e(f"v_lshlrev_b32 v{vDB+i}, 12, v{vDB+i}")
        e(f"v_xor_b32 v{t2}, {4*i}, v{t1}")
        e(f"v_lshl_add_u32 v{vDB+i}, v{t2}, 4, v{vDB+i}")
    e(f"s_lshl_b32 s{sM0A}, s{sW}, 10")
    e(f"s_lshl_b32 s{sM0B}, s{sW}, 11")
    e(f"s_add_u32 s{sM0B}, s{sM0B}, 8192")
    srd(SC, 84, 1024 * 1024 * 2)
    srd(SO, 90, 2048 * 1024 * 4)
    def setk2(j):
        e(f"s_add_u32 s{sKC}, s{sG}, {j>>1}")
        e(f"s_and_b32 s{sKC}, s{sKC}, 15")
        e(f"s_lshl_b32 s{sKC}, s{sKC}, 7")
        e(f"s_add_u32 s{sK}, s{sKC}, {(j&1)*2048}")
        e(f"s_mov_b32 s{SC}, s{84 + 2*(j&1)}")
        e(f"s_and_b32 s{SC+1}, s{85 + 2*(j&1)}, 0xffff")
    def dma2(i3, slot_imm=None):
        base = sM0A if i3 == 0 else sM0B
        off = 0 if i3 == 0 else (i3 - 1) * 1024
        if slot_imm is not None:
            e(f"s_add_u32 m0, s{base}, {slot_imm*SLOT + off}")
        else:
            e(f"s_add_u32 s61, s{base}, s{sWr}")
            e(f"s_add_u32 m0, s61, {off}")
        e("s_nop 0")
        if i3 == 0:
            e(f"buffer_load_dwordx4 v{vDA}, s[{SC}:{SC+3}], s{sKC} offen lds")
        else:
            e(f"buffer_load_dwordx4 v{vDB+i3-1}, s[{SH}:{SH+3}], s{sK} offen" + os.environ.get("HLD", " sc1") + " lds")
    e(f"v_lshrrev_b32 v{t0}, 1, v{vL31}")
    e(f"v_and_b32 v{t0}, 7, v{t0}")
    e(f"v_xor_b32 v{t0}, v{t0}, v{vHh}")
    e(f"s_lshl_b32 s52, s{sKh}, 2")
    for ks in range(2):
        e(f"s_add_u32 s53, s52, {2*ks}")
        e(f"v_xor_b32 v{t1}, s53, v{t0}")
        e(f"v_lshlrev_b32 v{t1}, 4, v{t1}")
        e(f"v_lshl_add_u32 v{vRA+ks}, v{vL31}, 7, v{t1}")
        e(f"s_lshl_b32 s53, s{sWt}, 12")
        e("s_add_u32 s53, s53, 8192")
        e(f"v_add_u32 v{vRB+ks}, s53, v{vRA+ks}")
    for i in range(32):
        e(f"v_mov_b32 v{vAcc+i}, 0")
    e(f"v_mov_b32 v{vOA}, v{vXO}")
    e("s_waitcnt vmcnt(4)")
    for p in range(2):
        e(f"v_lshlrev_b32 v{t2+2*p}, 16, v{vD+p}")
        e(f"v_and_b32 v{t2+2*p+1}, 0xffff0000, v{vD+p}")
    for p in range(8):
        e(f"v_lshlrev_b32 v{t0}, 16, v{vX+p}")
        e(f"v_and_b32 v{t1}, 0xffff0000, v{vX+p}")
        e(f"v_mul_f32 v{t0}, v{t0}, v{t2+2*(p&1)}")
        e(f"v_mul_f32 v{t1}, v{t1}, v{t2+2*(p&1)+1}")
        e(f"v_cvt_pk_bf16_f32 v{t0}, v{t0}, v{t1}")
        e(f"v_lshlrev_b32 v{vS+2*p}, 16, v{t0}")
        e(f"v_and_b32 v{vS+2*p+1}, 0xffff0000, v{t0}")
    e("s_waitcnt vmcnt(0)")
    e("s_mov_b64 exec, 1")
    e(f"buffer_store_dword v{vt1}, v{vt0}, s[{SH}:{SH+3}], 0 offen sc1")
    e("s_mov_b64 exec, -1")
    stamp(10)
    e("s_barrier")
    stamp(11)
    for st in range(2):
        setk2(st)
        dma2(0, st); dma2(1, st); dma2(2, st)
    for st in range(2, PF):
        setk2(st)
        dma2(0, st)
    stamp(12)
    e(f"s_cmp_lg_u32 s{sW}, 0")
    e("s_cbranch_scc1 K2_polldone")
    e(f"v_lshlrev_b32 v{vT+4}, 3, v{vLane}")
    e(f"s_lshl_b32 s52, s{sC}, 9")
    e(f"s_add_u32 s52, s52, {HFL}")
    e(f"v_add_u32 v{vT+5}, s52, v{vT+4}")
    e("s_mov_b32 s56, 0")
    e("K2_poll:")
    e(f"buffer_load_dwordx2 v[{vT+6}:{vT+7}], v{vT+5}, s[{SH}:{SH+3}], 0 offen sc1")
    e("s_add_u32 s56, s56, 1")
    e("s_waitcnt vmcnt(0)")
    e(f"v_cmp_ne_u32 vcc, 1, v{vT+6}")
    e(f"v_cmp_ne_u32 s[54:55], 1, v{vT+7}")
    e("s_or_b64 s[54:55], s[54:55], vcc")
    e("s_cbranch_scc0 K2_polldone")
    e("s_cmp_lt_u32 s56, 0x200000")
    e("s_cbranch_scc1 K2_poll")
    e("K2_polldone:")
    e("s_barrier")
    stamp(6)
    for st in range(2, PF):
        setk2(st)
        dma2(1, st); dma2(2, st)
    def rd2(va, vb, fb):
        r = []
        for mt in range(2):
            r.append(f"ds_read_b128 v[{fb+mt*4}:{fb+mt*4+3}], v{va} offset:{mt*4096}")
        r.append(f"ds_read_b128 v[{fb+8}:{fb+11}], v{vb}")
        return r
    def mf2(fb):
        r = []
        for mt in range(2):
            a = vAcc + mt * 16
            r.append(f"v_mfma_f32_32x32x16_bf16 v[{a}:{a+15}], v[{fb+mt*4}:{fb+mt*4+3}], v[{fb+8}:{fb+11}], v[{a}:{a+15}]")
        return r
    e(f"s_waitcnt vmcnt({2*(PF-2)})")
    e("s_barrier")
    stamp(7)
    for s_ in rd2(vRA, vRB, vFA): e(s_)
    e(f"s_mov_b32 s{sI}, 0")
    e(f"s_mov_b32 s{sRd}, 0")
    e(f"s_mov_b32 s{sRdN}, {SLOT}")
    e(f"s_mov_b32 s{sWr}, {PF*SLOT}")
    def book2(nxt_pf):
        e(f"s_mov_b32 s{sWr}, s{sRd}")
        e(f"s_mov_b32 s{sRd}, s{sRdN}")
        e(f"s_add_u32 s{sRdN}, s{sRdN}, {SLOT}")
        e(f"s_cmp_ge_u32 s{sRdN}, {NS*SLOT}")
        e(f"s_cselect_b32 s{sRdN}, 0, s{sRdN}")
        e(f"s_add_u32 s{sI}, s{sI}, 1")
        e(f"v_add_u32 v{vA1}, s{sRd}, v{vRA+1}")
        e(f"v_add_u32 v{vB1}, s{sRd}, v{vRB+1}")
        e(f"v_add_u32 v{vA0}, s{sRdN}, v{vRA}")
        e(f"v_add_u32 v{vB0}, s{sRdN}, v{vRB}")
        if nxt_pf:
            e(f"s_add_u32 s52, s{sI}, {PF}")
            e("s_lshr_b32 s53, s52, 1")
            e(f"s_add_u32 s{sKC}, s{sG}, s53")
            e(f"s_and_b32 s{sKC}, s{sKC}, 15")
            e(f"s_lshl_b32 s{sKC}, s{sKC}, 7")
            e("s_and_b32 s52, s52, 1")
            e("s_lshl_b32 s53, s52, 11")
            e(f"s_add_u32 s{sK}, s{sKC}, s53")
            e("s_cmp_eq_u32 s52, 0")
            e(f"s_cselect_b32 s{SC}, s84, s86")
            e(f"s_cselect_b32 s53, s85, s87")
            e(f"s_and_b32 s{SC+1}, s53, 0xffff")
    def body2(with_dma, wait):
        rB = rd2(vA1, vB1, vFB); mA = mf2(vFA)
        e(mA[0])
        for s_ in rB: e(s_)
        if with_dma: dma2(0)
        e(mA[1])
        for s_ in rd2(vA0, vB0, vFA): e(s_)
        if with_dma: dma2(1)
        e("s_waitcnt lgkmcnt(3)")
        mB = mf2(vFB)
        e(mB[0])
        if with_dma: dma2(2)
        book2(with_dma)
        e(mB[1])
        e(wait)
    e(f"v_add_u32 v{vA1}, s{sRd}, v{vRA+1}")
    e(f"v_add_u32 v{vB1}, s{sRd}, v{vRB+1}")
    e(f"v_add_u32 v{vA0}, s{sRdN}, v{vRA}")
    e(f"v_add_u32 v{vB0}, s{sRdN}, v{vRB}")
    setk2(PF)
    e("s_waitcnt lgkmcnt(0)")
    body2(True, "s_waitcnt vmcnt(7) lgkmcnt(0)")
    e("s_barrier")
    body2(True, "s_waitcnt vmcnt(8) lgkmcnt(0)")
    e("s_barrier")
    e("K2_loop:")
    body2(True, f"s_waitcnt vmcnt({3*(PF-2)}) lgkmcnt(0)")
    e(f"s_cmp_lt_u32 s{sI}, {NST-PF}")
    e("s_barrier")
    e("s_cbranch_scc1 K2_loop")
    for j in range(PF):
        n = 3 * (PF - 3 - j)
        body2(False, f"s_waitcnt vmcnt({n}) lgkmcnt(0)" if n >= 0 else "s_waitcnt lgkmcnt(0)")
        e("s_barrier")
    stamp(8)
    vXW, vXR = vT, vT + 1
    RS = 272; PB = 128 * RS
    e(f"s_lshl_b32 s52, s{sWt}, 5")
    e(f"v_add_u32 v{vXW}, s52, v{vL31}")
    e(f"v_mul_u32_u24 v{vXW}, {RS}, v{vXW}")
    e(f"v_lshl_add_u32 v{vXW}, v{vHh}, 6, v{vXW}")
    e(f"s_mul_i32 s52, s{sKh}, {PB}")
    e(f"v_add_u32 v{vXW}, s52, v{vXW}")
    e(f"v_lshrrev_b32 v{vXR}, 4, v{vLane}")
    e(f"s_lshl_b32 s52, s{sW}, 4")
    e(f"v_add_u32 v{vXR}, s52, v{vXR}")
    e(f"v_mul_u32_u24 v{vXR}, {RS}, v{vXR}")
    e(f"v_and_b32 v{vT+2}, 15, v{vLane}")
    e(f"v_lshl_add_u32 v{vXR}, v{vT+2}, 4, v{vXR}")
    e("s_nop 4")
    for mt in range(2):
        for i in range(4):
            e(f"ds_write_b128 v{vXW}, v[{vAcc+mt*16+i*4}:{vAcc+mt*16+i*4+3}] offset:{mt*128+i*16}")
    e("s_waitcnt lgkmcnt(0)")
    e("s_barrier")
    for i in range(4):
        e(f"ds_read_b128 v[{vR+i*4}:{vR+i*4+3}], v{vXR} offset:{i*4*RS}")
        e(f"ds_read_b128 v[{vFA+i*4}:{vFA+i*4+3}], v{vXR} offset:{PB+i*4*RS}")
    for i in range(4):
        e(f"s_waitcnt lgkmcnt({6-2*i})")
        for k in range(4):
            e(f"v_add_f32 v{vR+i*4+k}, v{vR+i*4+k}, v{vFA+i*4+k}")
            e(f"v_add_f32 v{vR+i*4+k}, v{vR+i*4+k}, v{vS+i*4+k}")
        e(f"buffer_store_dwordx4 v[{vR+i*4}:{vR+i*4+3}], v{vOA}, s[{SO}:{SO+3}], 0 offen")
        if i < 3: e(f"v_add_u32 v{vOA}, 16384, v{vOA}")
    stamp(9)
    if STAMP:
        e(f"s_cmp_lg_u32 s{sW}, 0")
        e(f"s_cbranch_scc1 KF_done")
        e("s_mov_b64 exec, 1")
        e(f"s_lshl_b32 s62, s2, 6")
        e(f"s_add_u32 s62, s62, {STB}")
        e(f"v_mov_b32 v{vT}, s62")
        e(f"v_mov_b32 v{vT+2}, 128")
        for i in range(13):
            e(f"v_mov_b32 v{vT+1}, s{70+i}")
            e(f"buffer_store_dword v{vT+1}, v{vT}, s[{SH}:{SH+3}], 0 offen offset:{4*i}")
            e("s_cmp_lg_u32 s2, 100")
            e(f"s_cbranch_scc1 SK{i}")
            e(f"buffer_store_dword v{vT+1}, v{vT+2}, s[{SD}:{SD+3}], 0 offen offset:{4*i}")
            e(f"SK{i}:")
    e("KF_done:")
    e("s_endpgm")

gen()
out = HDR + "\n".join(L) + f"""
.section .rodata,"a"
.p2align 6
.amdhsa_kernel {KN}
  .amdhsa_next_free_vgpr 256
  .amdhsa_next_free_sgpr 96
  .amdhsa_accum_offset 256
  .amdhsa_group_segment_fixed_size 0
  .amdhsa_kernarg_size 96
  .amdhsa_user_sgpr_count 2
  .amdhsa_user_sgpr_kernarg_segment_ptr 1
  .amdhsa_system_sgpr_workgroup_id_x 1
  .amdhsa_float_denorm_mode_32 3
.end_amdhsa_kernel
"""
path = sys.argv[1] if len(sys.argv) > 1 else "standalone__ssm_conv_s5__prompt.s"
open(path, "w").write(out)
print("wrote", path, len(out), "bytes")
```

```python
import sys, os, struct

L = []
STAMP = os.environ.get("STAMP", "0") == "1"
ROT = int(os.environ.get("ROT", "15"))
TOUCH = os.environ.get("TOUCH", "0") == "1"
def e(s=""):
    L.append("    " + s if s and not s.endswith(":") and not s.startswith(".") and not s.startswith(";") else s)

LOG2E = 0x3fb8aa3b
INV2PI = 0x3e22f983
AGG = 8 * 1024 * 1024
HFL = AGG + 131072
STB = HFL + 8192
KN = "standalone__ssm_conv_s5__prompt_kernel"

HDR = """; Kernarg layout (96 bytes): x, Lambda_re, Lambda_im, B_re, B_im, C_re, C_im, log_dt, Dskip, out, debug, ws
; @launch grid=(256,1,1) block=(512,1,1) lds=163840
.amdgcn_target "amdgcn-amd-amdhsa--gfx950"
.text
"""

def srd(d, base, size):
    e(f"s_mov_b32 s{d}, s{base}")
    e(f"s_and_b32 s{d+1}, s{base+1}, 0xffff")
    e(f"s_mov_b32 s{d+2}, {size}")
    e(f"s_mov_b32 s{d+3}, 0x00020000")

def stamp(n):
    if STAMP:
        e(f"s_memrealtime s[62:63]")
        e("s_waitcnt lgkmcnt(0)")
        e(f"s_mov_b32 s{70+n}, s62")

def lam_params(vch, out, tmp, sLre, sLim, sLdt, want):
    e(f"v_lshlrev_b32 v{tmp+3}, 1, v{vch}")
    e(f"global_load_ushort v{tmp}, v{tmp+3}, s[{sLre}:{sLre+1}]")
    e(f"global_load_ushort v{tmp+1}, v{tmp+3}, s[{sLim}:{sLim+1}]")
    e(f"global_load_ushort v{tmp+2}, v{tmp+3}, s[{sLdt}:{sLdt+1}]")
    def compute():
        lre, lim, ldt = tmp, tmp + 1, tmp + 2
        a, b, c, d, f, g = tmp + 3, tmp + 4, tmp + 5, tmp + 6, tmp + 7, tmp + 8
        e(f"v_lshlrev_b32 v{lre}, 16, v{lre}")
        e(f"v_lshlrev_b32 v{lim}, 16, v{lim}")
        e(f"v_lshlrev_b32 v{ldt}, 16, v{ldt}")
        e(f"v_mul_f32 v{a}, {LOG2E:#x}, v{ldt}")
        e(f"v_exp_f32 v{a}, v{a}")
        e("s_nop 0")
        e(f"v_cvt_pk_bf16_f32 v{a}, v{a}, v{a}")
        e(f"v_lshlrev_b32 v{a}, 16, v{a}")
        e(f"v_mul_f32 v{b}, v{a}, v{lre}")
        e(f"v_mul_f32 v{c}, v{a}, v{lim}")
        e(f"v_mul_f32 v{b}, {LOG2E:#x}, v{b}")
        e(f"v_mul_f32 v{c}, {INV2PI:#x}, v{c}")
        for nm, n in (("l1", 1.0), ("l16", 16.0), ("l128", 128.0)):
            if nm + "r" not in want and not (nm == "l1" and "s2r" in want):
                continue
            rr = out.get(nm + "r", tmp + 9); ii = out.get(nm + "i", tmp + 10)
            nb = struct.unpack("<I", struct.pack("<f", n))[0]
            e(f"v_mul_f32 v{d}, {nb:#x}, v{b}")
            e(f"v_mul_f32 v{f}, {nb:#x}, v{c}")
            e(f"v_exp_f32 v{d}, v{d}")
            e(f"v_fract_f32 v{f}, v{f}")
            e(f"v_cos_f32 v{g}, v{f}")
            e(f"v_sin_f32 v{f}, v{f}")
            e("s_nop 0")
            e(f"v_mul_f32 v{rr}, v{d}, v{g}")
            e(f"v_mul_f32 v{ii}, v{d}, v{f}")
            if nm == "l1" and "s2r" in want:
                e(f"v_add_f32 v{d}, -1.0, v{rr}")
                e(f"v_mul_f32 v{f}, v{lre}, v{lre}")
                e(f"v_fma_f32 v{f}, v{lim}, v{lim}, v{f}")
                e(f"v_rcp_f32 v{f}, v{f}")
                e(f"v_mul_f32 v{g}, v{d}, v{lre}")
                e(f"v_fma_f32 v{g}, v{ii}, v{lim}, v{g}")
                e(f"v_mul_f32 v{a}, v{ii}, v{lre}")
                e(f"v_fma_f32 v{a}, -v{d}, v{lim}, v{a}")
                e(f"v_add_f32 v{f}, v{f}, v{f}")
                e(f"v_mul_f32 v{out['s2r']}, v{g}, v{f}")
                e(f"v_mul_f32 v{out['s2i']}, v{a}, v{f}")
    return compute

def cmad(hr, hi, lr, li, br, bi, t0, t1):
    e(f"v_fma_f32 v{t0}, v{lr}, v{hr}, v{br}")
    e(f"v_fma_f32 v{t1}, v{lr}, v{hi}, v{bi}")
    e(f"v_fma_f32 v{t0}, -v{li}, v{hi}, v{t0}")
    e(f"v_fma_f32 v{hi}, v{li}, v{hr}, v{t1}")
    e(f"v_mov_b32 v{hr}, v{t0}")

def gen():
    e(f".globl {KN}")
    e(".p2align 8")
    e(f".type {KN},@function")
    e(f"{KN}:")
    e("s_cmp_ge_u32 s2, 256")
    e("s_cbranch_scc1 KF_done")
    e("s_load_dwordx4 s[4:7], s[0:1], 0")
    e("s_load_dwordx4 s[8:11], s[0:1], 16")
    e("s_load_dwordx2 s[12:13], s[0:1], 32")
    e("s_load_dwordx2 s[14:15], s[0:1], 56")
    e("s_load_dwordx4 s[16:19], s[0:1], 80")
    e("s_load_dwordx4 s[84:87], s[0:1], 40")
    e("s_load_dwordx4 s[88:91], s[0:1], 64")
    NS = 5; SLOT = 32768; NST = 16; PF = 4
    sC, sG, sW, sKh, sWm, sWn, sT2, sK, sM0A, sM0B = 40, 41, 42, 43, 44, 45, 46, 47, 48, 49
    sI, sRd, sRdN, sWr = 36, 37, 38, 39
    sHF = 58
    SX, SB, SH, SD = 20, 24, 28, 32
    e("s_and_b32 s3, s2, 7")
    e("s_lshr_b32 s60, s2, 3")
    e("s_lshr_b32 s52, s3, 1")
    e("s_lshl_b32 s52, s52, 2")
    e("s_lshr_b32 s53, s60, 3")
    e(f"s_add_u32 s{sC}, s52, s53")
    e("s_and_b32 s52, s3, 1")
    e("s_lshl_b32 s52, s52, 3")
    e("s_and_b32 s53, s60, 7")
    e(f"s_add_u32 s{sG}, s52, s53")
    e(f"s_and_b32 s60, s60, {ROT}")
    vLane = 1; vL31 = 2; vHh = 3
    vDA = 4; vDB = 6
    vRA = 8; vRB = 10
    vA0, vB0, vA1, vB1 = 12, 13, 14, 15
    vP = 20; vQ = 26
    vT = 30; vT2 = 48
    vFA = 64; vFB = 80
    vAcc = 96
    vR = 160
    vE = 192
    e(f"v_and_b32 v{vLane}, 63, v0")
    e(f"v_lshrrev_b32 v{vT}, 6, v0")
    e("s_nop 0")
    e(f"v_readfirstlane_b32 s{sW}, v{vT}")
    e(f"v_and_b32 v{vL31}, 31, v0")
    e(f"v_lshrrev_b32 v{vHh}, 5, v{vLane}")
    t0, t1, t2 = vE, vE + 1, vE + 2
    e(f"v_lshrrev_b32 v{t0}, 3, v{vLane}")
    e(f"v_and_b32 v{t0}, 3, v{t0}")
    e(f"v_lshl_add_u32 v{t0}, v{vHh}, 4, v{t0}")
    e(f"v_lshrrev_b32 v{t1}, 4, v{vLane}")
    e(f"v_and_b32 v{t2}, 7, v{vLane}")
    e(f"v_xor_b32 v{t1}, v{t1}, v{t2}")
    e(f"s_lshr_b32 s{sKh}, s{sW}, 2")
    e(f"s_lshr_b32 s{sWm}, s{sW}, 1")
    e(f"s_and_b32 s{sWm}, s{sWm}, 1")
    e(f"s_and_b32 s{sWn}, s{sW}, 1")
    e(f"s_lshl_b32 s{sT2}, s{sWm}, 1")
    e(f"s_add_u32 s{sT2}, s{sT2}, s{sKh}")
    e(f"s_lshl_b32 s{sT2}, s{sT2}, 1")
    for i in range(2):
        e(f"s_lshl_b32 s52, s{sW}, 1")
        e(f"s_add_u32 s52, s52, {i}")
        e("s_lshr_b32 s53, s52, 2")
        e("s_lshl_b32 s53, s53, 5")
        e("s_and_b32 s52, s52, 3")
        e("s_lshl_b32 s52, s52, 2")
        e("s_add_u32 s52, s52, s53")
        e(f"s_lshl_b32 s53, s{sC}, 7")
        e("s_add_u32 s52, s52, s53")
        e(f"v_add_u32 v{vDA+i}, s52, v{t0}")
        e(f"v_lshlrev_b32 v{vDA+i}, 11, v{vDA+i}")
        e(f"v_xor_b32 v{t2}, {4*i}, v{t1}")
        e(f"v_lshl_add_u32 v{vDA+i}, v{t2}, 4, v{vDA+i}")
        e(f"s_lshl_b32 s52, s{sG}, 6")
        e(f"s_lshl_b32 s53, s{sKh}, 5")
        e("s_add_u32 s52, s52, s53")
        e(f"s_lshl_b32 s53, s{sWn}, 4")
        e("s_add_u32 s52, s52, s53")
        e(f"s_add_u32 s52, s52, {8*i}")
        e(f"v_lshrrev_b32 v{vDB+i}, 3, v{vLane}")
        e(f"v_add_u32 v{vDB+i}, s52, v{vDB+i}")
        e(f"v_lshlrev_b32 v{vDB+i}, 11, v{vDB+i}")
        e(f"v_lshl_add_u32 v{vDB+i}, v{t2}, 4, v{vDB+i}")
    e(f"s_lshl_b32 s{sM0A}, s{sW}, 11")
    e(f"s_add_u32 s{sM0B}, s{sM0A}, 16384")
    e("s_waitcnt lgkmcnt(0)")
    stamp(0)
    srd(SX, 4, 2048 * 1024 * 2)
    e(f"s_cmp_eq_u32 s{sWm}, 0")
    e("s_cselect_b32 s52, s10, s12")
    e("s_cselect_b32 s53, s11, s13")
    srd(SB, 52, 1024 * 1024 * 2)
    def setk_imm(st):
        e(f"s_add_u32 s{sK}, s60, {st}")
        e(f"s_and_b32 s{sK}, s{sK}, 15")
        e(f"s_lshl_b32 s{sK}, s{sK}, 7")
    def dma(i4, slot_imm=None):
        base = sM0A if i4 < 2 else sM0B
        off = (i4 % 2) * 1024
        if slot_imm is not None:
            e(f"s_add_u32 m0, s{base}, {slot_imm*SLOT + off}")
        else:
            e(f"s_add_u32 s61, s{base}, s{sWr}")
            e(f"s_add_u32 m0, s61, {off}")
        e("s_nop 0")
        if i4 < 2:
            e(f"buffer_load_dwordx4 v{vDA+i4}, s[{SX}:{SX+3}], s{sK} offen lds")
        else:
            e(f"buffer_load_dwordx4 v{vDB+i4-2}, s[{SB}:{SB+3}], s{sK} offen lds")
    e(f"s_lshl_b32 s52, s{sG}, 6")
    e(f"s_lshl_b32 s53, s{sWn}, 5")
    e("s_add_u32 s53, s53, s52")
    e(f"v_add_u32 v{vT+12}, s53, v{vL31}")
    e(f"v_add_u32 v{vT2+12}, s52, v{vLane}")
    cp1 = lam_params(vT + 12, dict(l1r=vP, l1i=vP+1, l16r=vP+2, l16i=vP+3, s2r=vP+4, s2i=vP+5), vT, 6, 8, 14,
                     {"l1r", "l16r", "s2r"})
    cp2 = lam_params(vT2 + 12, dict(l16r=vQ, l16i=vQ+1, l128r=vQ+2, l128i=vQ+3), vT2, 6, 8, 14, {"l16r", "l128r"})
    for st in range(PF):
        setk_imm(st)
        for i4 in range(4):
            dma(i4, st)
    srd(SH, 18, STB + (65536 if STAMP else 0))
    srd(SD, 16, 256)
    e(f"s_lshl_b32 s52, s{sC}, 4")
    e(f"s_add_u32 s54, s52, s{sG}")
    e("s_lshl_b32 s52, s54, 9")
    e(f"s_add_u32 s52, s52, {AGG}")
    e(f"s_lshl_b32 s53, s{sW}, 6")
    e("s_add_u32 s52, s52, s53")
    e(f"v_lshlrev_b32 v{vE+3}, 2, v{vLane}")
    e(f"v_add_u32 v{vE+3}, s52, v{vE+3}")
    e(f"v_mov_b32 v{vE+4}, -1")
    e("s_lshl_b32 s52, s54, 3")
    e(f"s_add_u32 s52, s52, s{sW}")
    e("s_lshl_b32 s52, s52, 2")
    e(f"s_add_u32 s{sHF}, s52, {HFL}")
    e("s_mov_b64 exec, 0x10000")
    e(f"v_mov_b32 v{vE+3}, s{sHF}")
    e("s_mov_b64 exec, 0x1ffff")
    e(f"buffer_store_dword v{vE+4}, v{vE+3}, s[{SH}:{SH+3}], 0 offen sc1")
    e("s_mov_b64 exec, -1")
    if TOUCH:
        e(f"v_lshrrev_b32 v{vE+3}, 4, v{vLane}")
        e(f"v_and_b32 v{vE+4}, 15, v{vLane}")
        e(f"s_and_b32 s52, s{sG}, 7")
        e("s_lshl_b32 s52, s52, 4")
        e(f"s_and_b32 s53, s{sW}, 3")
        e("s_lshl_b32 s53, s53, 2")
        e("s_add_u32 s52, s52, s53")
        e(f"s_lshl_b32 s53, s{sC}, 7")
        e("s_add_u32 s52, s52, s53")
        e(f"v_add_u32 v{vE+5}, s52, v{vE+3}")
        e(f"v_lshlrev_b32 v{vE+5}, 11, v{vE+5}")
        e(f"v_lshl_add_u32 v{vE+5}, v{vE+4}, 7, v{vE+5}")
        e(f"global_load_dword v{vE+30}, v{vE+5}, s[4:5]")
        e(f"s_and_b32 s52, s{sC}, 3")
        e("s_lshl_b32 s52, s52, 4")
        e(f"s_lshr_b32 s53, s{sW}, 1")
        e("s_lshl_b32 s53, s53, 2")
        e("s_add_u32 s52, s52, s53")
        e(f"s_lshl_b32 s53, s{sG}, 6")
        e("s_add_u32 s52, s52, s53")
        e(f"v_add_u32 v{vE+5}, s52, v{vE+3}")
        e(f"v_lshlrev_b32 v{vE+5}, 11, v{vE+5}")
        e(f"v_lshl_add_u32 v{vE+5}, v{vE+4}, 7, v{vE+5}")
        e(f"s_cmp_eq_u32 s{sWn}, 0")
        e("s_cselect_b32 s52, s10, s12")
        e("s_cselect_b32 s53, s11, s13")
        e(f"global_load_dword v{vE+30}, v{vE+5}, s[52:53]")
    e(f"v_lshrrev_b32 v{t0}, 1, v{vL31}")
    e(f"v_and_b32 v{t0}, 7, v{t0}")
    e(f"v_xor_b32 v{t0}, v{t0}, v{vHh}")
    e(f"s_lshl_b32 s52, s{sKh}, 2")
    for ks in range(2):
        e(f"s_add_u32 s53, s52, {2*ks}")
        e(f"v_xor_b32 v{t1}, s53, v{t0}")
        e(f"v_lshlrev_b32 v{t1}, 4, v{t1}")
        e(f"v_lshl_add_u32 v{t1}, v{vL31}, 7, v{t1}")
        e(f"s_lshl_b32 s53, s{sWm}, 13")
        e(f"v_add_u32 v{vRA+ks}, s53, v{t1}")
        e(f"s_lshl_b32 s53, s{sWn}, 13")
        e("s_add_u32 s53, s53, 16384")
        e(f"v_add_u32 v{vRB+ks}, s53, v{t1}")
    for i in range(64):
        e(f"v_mov_b32 v{vAcc+i}, 0")
    e(f"s_waitcnt vmcnt({19 if TOUCH else 17})")
    cp1(); cp2()
    e(f"s_waitcnt vmcnt({11 if TOUCH else 9})")
    def rd(va, vb, fb):
        r = []
        for mt in range(2):
            r.append(f"ds_read_b128 v[{fb+mt*4}:{fb+mt*4+3}], v{va} offset:{mt*4096}")
        for nt in range(2):
            r.append(f"ds_read_b128 v[{fb+8+nt*4}:{fb+8+nt*4+3}], v{vb} offset:{nt*4096}")
        return r
    def mf(fb):
        r = []
        for mt in range(2):
            for nt in range(2):
                a = vAcc + (mt * 2 + nt) * 16
                r.append(f"v_mfma_f32_32x32x16_bf16 v[{a}:{a+15}], v[{fb+mt*4}:{fb+mt*4+3}], v[{fb+8+nt*4}:{fb+8+nt*4+3}], v[{a}:{a+15}]")
        return r
    e("s_barrier")
    stamp(1)
    for s_ in rd(vRA, vRB, vFA): e(s_)
    e(f"s_mov_b32 s{sI}, 0")
    e(f"s_mov_b32 s{sRd}, 0")
    e(f"s_mov_b32 s{sRdN}, {SLOT}")
    e(f"s_mov_b32 s{sWr}, {PF*SLOT}")
    def book(nxt_pf):
        e(f"s_mov_b32 s{sWr}, s{sRd}")
        e(f"s_mov_b32 s{sRd}, s{sRdN}")
        e(f"s_add_u32 s{sRdN}, s{sRdN}, {SLOT}")
        e(f"s_cmp_ge_u32 s{sRdN}, {NS*SLOT}")
        e(f"s_cselect_b32 s{sRdN}, 0, s{sRdN}")
        e(f"s_add_u32 s{sI}, s{sI}, 1")
        e(f"v_add_u32 v{vA1}, s{sRd}, v{vRA+1}")
        e(f"v_add_u32 v{vB1}, s{sRd}, v{vRB+1}")
        e(f"v_add_u32 v{vA0}, s{sRdN}, v{vRA}")
        e(f"v_add_u32 v{vB0}, s{sRdN}, v{vRB}")
        if nxt_pf:
            e(f"s_add_u32 s{sK}, s{sK}, 128")
            e(f"s_and_b32 s{sK}, s{sK}, 2047")
    def body(with_dma, wait):
        rB = rd(vA1, vB1, vFB); mA = mf(vFA)
        e(mA[0]); e(rB[0]); e(rB[1])
        e(mA[1]); e(rB[2]); e(rB[3])
        if with_dma: dma(0)
        e(mA[2])
        if with_dma: dma(1)
        e(mA[3])
        for s_ in rd(vA0, vB0, vFA): e(s_)
        e("s_waitcnt lgkmcnt(4)")
        mB = mf(vFB)
        e(mB[0])
        if with_dma: dma(2)
        e(mB[1])
        if with_dma: dma(3)
        e(mB[2])
        book(with_dma)
        e(mB[3])
        e(wait)
    e(f"v_add_u32 v{vA1}, s{sRd}, v{vRA+1}")
    e(f"v_add_u32 v{vB1}, s{sRd}, v{vRB+1}")
    e(f"v_add_u32 v{vA0}, s{sRdN}, v{vRA}")
    e(f"v_add_u32 v{vB0}, s{sRdN}, v{vRB}")
    setk_imm(PF)
    e("s_waitcnt lgkmcnt(0)")
    for _ in range(2):
        body(True, "s_waitcnt vmcnt(8) lgkmcnt(0)")
        e("s_barrier")
    e(f"s_lshl_b32 s52, 1, s{sC}")
    e(f"v_mov_b32 v{t0}, s52")
    e(f"s_lshl_b32 s53, s{sG}, 2")
    e(f"v_mov_b32 v{t1}, s53")
    e(f"s_cmp_lg_u32 s{sW}, 0")
    e("s_cbranch_scc1 K1_noflag")
    e("s_mov_b64 exec, 1")
    e(f"buffer_atomic_or v{t0}, v{t1}, s[{SD}:{SD+3}], 0 offen sc1")
    e("s_mov_b64 exec, -1")
    e("K1_noflag:")
    if os.environ.get("UNROLL", "0") == "1":
        for _ in range(NST - PF - 2):
            body(True, "s_waitcnt vmcnt(8) lgkmcnt(0)")
            e("s_barrier")
    else:
        e("K1_loop:")
        body(True, "s_waitcnt vmcnt(8) lgkmcnt(0)")
        e(f"s_cmp_lt_u32 s{sI}, {NST-PF}")
        e("s_barrier")
        e("s_cbranch_scc1 K1_loop")
    def warmup():
        e(f"s_cmp_lt_u32 s{sW}, 4")
        e("s_cselect_b32 s54, s84, s86")
        e("s_cselect_b32 s55, s85, s87")
        e(f"s_and_b32 s52, s{sC}, 3")
        e("s_lshl_b32 s52, s52, 4")
        e(f"s_and_b32 s53, s{sW}, 3")
        e("s_lshl_b32 s53, s53, 2")
        e("s_add_u32 s52, s52, s53")
        e(f"s_lshl_b32 s53, s{sG}, 6")
        e("s_add_u32 s52, s52, s53")
        e(f"v_lshrrev_b32 v{t0}, 4, v{vLane}")
        e(f"v_add_u32 v{t0}, s52, v{t0}")
        e(f"v_lshlrev_b32 v{t0}, 11, v{t0}")
        e(f"v_and_b32 v{t1}, 15, v{vLane}")
        e(f"v_lshl_add_u32 v{t0}, v{t1}, 7, v{t0}")
        if os.environ.get("WARM", "1") == "1":
            e(f"global_load_dword v{vE+30}, v{t0}, s[54:55]")
    for wi, wt in enumerate(("s_waitcnt vmcnt(4) lgkmcnt(0)", "s_waitcnt vmcnt(0) lgkmcnt(0)", "s_waitcnt lgkmcnt(0)", "s_waitcnt lgkmcnt(0)")):
        if wi == 2: warmup()
        body(False, wt)
        e("s_barrier")
    stamp(2)
    if os.environ.get("PADT"):
        for i in range(256):
            e(f"v_add_f32_{os.environ['PADT']} v{200+(i%8)}, v{200+(i%8)}, v{200+(i%8)}")
    EB = 0; HB = EB + 8192; XB = 12288; TB = 77824
    vXW = vE; vXR = vE + 1; vFl = vE + 2; vFa = vE + 3; vEr = vE + 4; vEi = vE + 5; vt0 = vE + 6; vt1 = vE + 7
    vES = vE + 8
    vHr = vE + 24; vHi = vE + 25; vE2 = vE + 26
    vAd = vE + 28
    e(f"v_and_b32 v{vFa}, 15, v{vLane}")
    e(f"v_lshlrev_b32 v{vFa}, 2, v{vFa}")
    e(f"buffer_load_dword v{vFl}, v{vFa}, s[{SD}:{SD+3}], 0 offen sc1")
    e(f"v_lshlrev_b32 v{vXW}, 4, v{vLane}")
    e(f"s_lshl_b32 s52, s{sW}, 13")
    e(f"s_xor_b32 s53, s52, {4<<13}")
    e(f"s_add_u32 s52, s52, {XB}")
    e(f"s_add_u32 s53, s53, {XB}")
    e(f"v_add_u32 v{vXR}, s53, v{vXW}")
    e(f"v_add_u32 v{vXW}, s52, v{vXW}")
    lr, li = vP, vP + 1
    vEa = vR; vEb = vR + 2; tA0 = vR + 4; tA1 = vR + 5; tB0 = vR + 6; tB1 = vR + 7
    e("s_nop 4")
    e(f"v_mov_b32 v{vEa}, v{vAcc}")
    e(f"v_mov_b32 v{vEa+1}, v{vAcc+16}")
    e(f"v_mov_b32 v{vEb}, v{vAcc+32}")
    e(f"v_mov_b32 v{vEb+1}, v{vAcc+48}")
    for q in range(1, 16):
        e(f"v_fma_f32 v{tA0}, v{lr}, v{vEa}, v{vAcc+q}")
        e(f"v_fma_f32 v{tB0}, v{lr}, v{vEb}, v{vAcc+32+q}")
        e(f"v_fma_f32 v{tA1}, v{lr}, v{vEa+1}, v{vAcc+16+q}")
        e(f"v_fma_f32 v{tB1}, v{lr}, v{vEb+1}, v{vAcc+48+q}")
        e(f"v_fma_f32 v{tA0}, -v{li}, v{vEa+1}, v{tA0}")
        e(f"v_fma_f32 v{tB0}, -v{li}, v{vEb+1}, v{tB0}")
        e(f"v_fma_f32 v{vEa+1}, v{li}, v{vEa}, v{tA1}")
        e(f"v_fma_f32 v{vEb+1}, v{li}, v{vEb}, v{tB1}")
        e(f"v_mov_b32 v{vEa}, v{tA0}")
        e(f"v_mov_b32 v{vEb}, v{tB0}")
    e(f"s_lshl_b32 s52, s{sWm}, 2")
    e(f"v_add_u32 v{vAd}, s52, v{vHh}")
    e(f"v_lshlrev_b32 v{vAd}, 9, v{vAd}")
    e(f"v_lshl_add_u32 v{vAd}, v{vL31}, 3, v{vAd}")
    e(f"s_lshl_b32 s52, s{sWn}, 8")
    e(f"s_lshl_b32 s53, s{sKh}, 12")
    e("s_add_u32 s52, s52, s53")
    e(f"v_add_u32 v{vAd}, s52, v{vAd}")
    e(f"ds_write_b64 v{vAd}, v[{vEa}:{vEa+1}] offset:{EB}")
    e(f"ds_write_b64 v{vAd}, v[{vEb}:{vEb+1}] offset:{EB+1024}")
    e(f"s_cmp_eq_u32 s{sKh}, 0")
    e("s_cbranch_scc0 K1_w1")
    for i in range(8):
        e(f"ds_write_b128 v{vXW}, v[{vAcc+32+i*4}:{vAcc+32+i*4+3}] offset:{i*1024}")
    e("s_branch K1_wd")
    e("K1_w1:")
    for i in range(8):
        e(f"ds_write_b128 v{vXW}, v[{vAcc+i*4}:{vAcc+i*4+3}] offset:{i*1024}")
    e("K1_wd:")
    e("s_waitcnt lgkmcnt(0)")
    e("s_barrier")
    def exch_read(tag):
        for i in range(8):
            e(f"ds_read_b128 v[{vR+i*4}:{vR+i*4+3}], v{vXR} offset:{i*1024}")
        e("s_waitcnt lgkmcnt(0)")
        e(f"s_cmp_eq_u32 s{sKh}, 0")
        e(f"s_cbranch_scc0 K1_a1{tag}")
        for i in range(32):
            e(f"v_add_f32 v{vR+i}, v{vR+i}, v{vAcc+i}")
        e(f"s_branch K1_ad{tag}")
        e(f"K1_a1{tag}:")
        for i in range(32):
            e(f"v_add_f32 v{vR+i}, v{vR+i}, v{vAcc+32+i}")
        e(f"K1_ad{tag}:")
    stamp(3)
    e(f"s_cmp_eq_u32 s{sW}, 0")
    e("s_cbranch_scc1 K1_lb")
    exch_read("x")
    e("s_branch K1_lbdone")
    e("K1_lb:")
    e(f"v_lshlrev_b32 v{vAd}, 3, v{vLane}")
    for s_ in range(8):
        e(f"ds_read_b64 v[{vES+2*s_}:{vES+2*s_+1}], v{vAd} offset:{EB+s_*512}")
        e(f"ds_read_b64 v[{vR+2*s_}:{vR+2*s_+1}], v{vAd} offset:{EB+4096+s_*512}")
    e("s_waitcnt lgkmcnt(0)")
    for s_ in range(16):
        e(f"v_add_f32 v{vES+s_}, v{vES+s_}, v{vR+s_}")
    for s_ in range(1, 8):
        cmad(vES, vES + 1, vQ, vQ + 1, vES + 2 * s_, vES + 2 * s_ + 1, vt0, vt1)
    e(f"s_lshl_b32 s52, s{sC}, 4")
    e(f"s_add_u32 s52, s52, s{sG}")
    e("s_lshl_b32 s52, s52, 9")
    e(f"s_add_u32 s52, s52, {AGG}")
    e(f"v_add_u32 v{vt0}, s52, v{vAd}")
    e(f"buffer_store_dwordx2 v[{vES}:{vES+1}], v{vt0}, s[{SH}:{SH+3}], 0 offen sc1")
    exch_read("z")
    e(f"v_mov_b32 v{vHr}, 0")
    e(f"v_mov_b32 v{vHi}, 0")
    e(f"s_lshl_b32 s57, 1, s{sC}")
    e("s_sub_u32 s52, s57, 1")
    e("s_mov_b32 s56, 0")
    e("s_waitcnt vmcnt(1)")
    e("K1_poll:")
    e(f"v_readlane_b32 s53, v{vFl}, s{sG}")
    e(f"v_and_b32 v{vt0}, s57, v{vFl}")
    e(f"v_cmp_eq_u32 vcc, 0, v{vt0}")
    e("s_and_b32 s53, s53, s52")
    e("s_cmp_eq_u32 s53, s52")
    e("s_cbranch_scc0 K1_pollagain")
    e("s_cmp_eq_u64 vcc, 0")
    e("s_cbranch_scc1 K1_polldone")
    e("K1_pollagain:")
    e(f"buffer_load_dword v{vFl}, v{vFa}, s[{SD}:{SD+3}], 0 offen sc1")
    e("s_add_u32 s56, s56, 1")
    e("s_waitcnt vmcnt(0)")
    e("s_cmp_lt_u32 s56, 0x200000")
    e("s_cbranch_scc1 K1_poll")
    e("K1_polldone:")
    e(f"s_cmp_eq_u32 s{sC}, 0")
    e("s_cbranch_scc1 K1_nogather")
    e(f"s_lshl_b32 s52, s{sG}, 9")
    e(f"s_add_u32 s52, s52, {AGG}")
    e(f"v_add_u32 v{vFl}, s52, v{vAd}")
    e("s_mov_b32 s56, 0")
    e("K1_round:")
    for cp in range(15):
        e(f"s_mov_b32 s53, {cp*8192}")
        e(f"buffer_load_dwordx2 v[{vAcc+2*cp}:{vAcc+2*cp+1}], v{vFl}, s[{SH}:{SH+3}], s53 offen sc1")
    e("s_add_u32 s56, s56, 1")
    e("s_cmp_ge_u32 s56, 0x100000")
    e("s_waitcnt vmcnt(0)")
    e("s_cbranch_scc1 K1_allvalid")
    for cp in range(15):
        e(f"s_cmp_le_u32 s{sC}, {cp}")
        e("s_cbranch_scc1 K1_allvalid")
        e(f"v_cmp_eq_u32 vcc, -1, v{vAcc+2*cp}")
        e(f"v_cmp_eq_u32 s[54:55], -1, v{vAcc+2*cp+1}")
        e("s_or_b64 s[54:55], s[54:55], vcc")
        e("s_cbranch_scc1 K1_round")
    e("K1_allvalid:")
    for cp in range(15):
        e(f"s_cmp_le_u32 s{sC}, {cp}")
        e("s_cbranch_scc1 K1_nogather")
        cmad(vHr, vHi, vQ + 2, vQ + 3, vAcc + 2 * cp, vAcc + 2 * cp + 1, vt0, vt1)
    e("K1_nogather:")
    e(f"ds_write_b64 v{vAd}, v[{vHr}:{vHi}] offset:{HB}")
    e("s_waitcnt lgkmcnt(0)")
    e("K1_lbdone:")
    e("s_barrier")
    stamp(4)
    vX = 224; vD = 240; vXO = 223
    e(f"s_lshl_b32 s52, s{sC}, 7")
    e(f"s_lshl_b32 s53, s{sW}, 4")
    e("s_add_u32 s52, s52, s53")
    e(f"v_lshrrev_b32 v{vt0}, 4, v{vLane}")
    e(f"v_add_u32 v{vt0}, s52, v{vt0}")
    e(f"s_lshl_b32 s52, s{sG}, 6")
    e(f"v_and_b32 v{vt1}, 15, v{vLane}")
    e(f"v_lshl_add_u32 v{vt1}, v{vt1}, 2, s52")
    e(f"v_lshlrev_b32 v{vXO}, 2, v{vt1}")
    e(f"v_lshl_add_u32 v{vXO}, v{vt0}, 12, v{vXO}")
    e(f"v_lshlrev_b32 v{vt1}, 1, v{vt1}")
    e(f"global_load_dwordx2 v[{vD}:{vD+1}], v{vt1}, s[88:89]")
    e(f"v_lshl_add_u32 v{vt1}, v{vt0}, 11, v{vt1}")
    for i in range(4):
        e(f"global_load_dwordx2 v[{vX+2*i}:{vX+2*i+1}], v{vt1}, s[4:5]")
        if i < 3: e(f"v_add_u32 v{vt1}, 8192, v{vt1}")
    e(f"v_lshlrev_b32 v{vAd}, 3, v{vL31}")
    e(f"s_lshl_b32 s52, s{sWn}, 8")
    e(f"v_add_u32 v{vAd}, s52, v{vAd}")
    e(f"ds_read_b64 v[{vHr}:{vHi}], v{vAd} offset:{HB}")
    for s_ in range(6):
        e(f"ds_read_b64 v[{vES+2*s_}:{vES+2*s_+1}], v{vAd} offset:{EB+s_*512}")
        e(f"ds_read_b64 v[{vAcc+2*s_}:{vAcc+2*s_+1}], v{vAd} offset:{EB+4096+s_*512}")
    e(f"s_lshl_b32 s52, s{sT2}, 9")
    e(f"v_add_u32 v{vt0}, s52, v{vAd}")
    e(f"ds_read_b64 v[{vE2}:{vE2+1}], v{vt0} offset:{EB}")
    e(f"ds_read_b64 v[{vAcc+12}:{vAcc+13}], v{vt0} offset:{EB+4096}")
    e("s_waitcnt lgkmcnt(0)")
    for s_ in range(12):
        e(f"v_add_f32 v{vES+s_}, v{vES+s_}, v{vAcc+s_}")
    e(f"v_add_f32 v{vE2}, v{vE2}, v{vAcc+12}")
    e(f"v_add_f32 v{vE2+1}, v{vE2+1}, v{vAcc+13}")
    for s_ in range(6):
        e(f"s_cmp_le_u32 s{sT2}, {s_}")
        e("s_cbranch_scc1 K1_cdone")
        cmad(vHr, vHi, vP + 2, vP + 3, vES + 2 * s_, vES + 2 * s_ + 1, vt0, vt1)
    e("K1_cdone:")
    e("s_mov_b32 s54, 0")
    e("s_mov_b32 s55, -1")
    e("s_mov_b64 exec, s[54:55]")
    cmad(vHr, vHi, vP + 2, vP + 3, vE2, vE2 + 1, vt0, vt1)
    e("s_mov_b64 exec, -1")
    s2r, s2i = vP + 4, vP + 5
    for q in range(16):
        cmad(vHr, vHi, lr, li, vR + q, vR + 16 + q, vt0, vt1)
        e(f"v_mul_f32 v{vAcc+q}, v{s2r}, v{vHr}")
        e(f"v_fma_f32 v{vAcc+q}, -v{s2i}, v{vHi}, v{vAcc+q}")
        e(f"v_mul_f32 v{vAcc+16+q}, -v{s2r}, v{vHi}")
        e(f"v_fma_f32 v{vAcc+16+q}, -v{s2i}, v{vHr}, v{vAcc+16+q}")
    vPk = vAcc + 32
    for p in range(16):
        e(f"v_cvt_pk_bf16_f32 v{vPk+p}, v{vAcc+2*p}, v{vAcc+2*p+1}")
    e(f"s_lshl_b32 s52, s{sW}, 12")
    e(f"s_add_u32 s52, s52, {TB}")
    e(f"v_lshlrev_b32 v{vAd}, 6, v{vL31}")
    e(f"v_lshl_add_u32 v{vAd}, v{vHh}, 5, v{vAd}")
    e(f"v_add_u32 v{vAd}, s52, v{vAd}")
    e(f"ds_write_b128 v{vAd}, v[{vPk}:{vPk+3}]")
    e(f"ds_write_b128 v{vAd}, v[{vPk+4}:{vPk+7}] offset:16")
    e(f"ds_write_b128 v{vAd}, v[{vPk+8}:{vPk+11}] offset:2048")
    e(f"ds_write_b128 v{vAd}, v[{vPk+12}:{vPk+15}] offset:2064")
    e(f"v_lshrrev_b32 v{vt0}, 4, v{vLane}")
    e(f"v_lshrrev_b32 v{vt1}, 2, v{vLane}")
    e(f"v_and_b32 v{vt1}, 3, v{vt1}")
    e(f"v_lshl_add_u32 v{vt1}, v{vt0}, 3, v{vt1}")
    e(f"v_lshlrev_b32 v{vt1}, 6, v{vt1}")
    e(f"v_and_b32 v{vAd}, 3, v{vLane}")
    e(f"v_lshl_add_u32 v{vt1}, v{vAd}, 3, v{vt1}")
    e(f"v_add_u32 v{vt1}, s52, v{vt1}")
    e(f"v_and_b32 v{vAd}, 15, v{vLane}")
    e(f"s_lshl_b32 s52, s{sC}, 7")
    e(f"s_lshl_b32 s53, s{sT2}, 4")
    e("s_add_u32 s52, s52, s53")
    e(f"v_add_u32 v{vAd}, s52, v{vAd}")
    e(f"v_lshlrev_b32 v{vAd}, 12, v{vAd}")
    e(f"v_lshl_add_u32 v{vAd}, v{vt0}, 4, v{vAd}")
    e(f"s_lshl_b32 s52, s{sG}, 7")
    e(f"s_lshl_b32 s53, s{sWn}, 6")
    e("s_add_u32 s52, s52, s53")
    e(f"v_add_u32 v{vAd}, s52, v{vAd}")
    e(f"v_add_u32 v{vt0}, {16*4096}, v{vAd}")
    e("s_waitcnt lgkmcnt(0)")
    vO = vR
    for part in range(2):
        for th in range(2):
            b = vO + (part * 2 + th) * 4
            for u in range(2):
                e(f"ds_read_b64_tr_b16 v[{b+2*u}:{b+2*u+1}], v{vt1} offset:{part*2048 + u*256 + th*32}")
    e("s_waitcnt lgkmcnt(0)")
    for part in range(2):
        for th in range(2):
            b = vO + (part * 2 + th) * 4
            e(f"buffer_store_dwordx4 v[{b}:{b+3}], v{vAd if th == 0 else vt0}, s[{SH}:{SH+3}], 0 offen offset:{part*2048} sc1")
    stamp(5)
    NS = 6; SLOT = 24576; NST = 32; PF = NS - 1
    sWt, sKC = 44, 45
    SC, SO = 20, 24
    vFlg = vt0
    e(f"v_mov_b32 v{vt0}, s{sHF}")
    e(f"v_mov_b32 v{vt1}, 1")
    vDA = 4; vDB = 5
    vS = 232; vT = 52
    vFA = 64; vFB = 76
    vAcc = 96; vR = 128; vOA = 144
    t0, t1, t2 = vT, vT + 1, vT + 2
    e(f"s_and_b32 s{sWt}, s{sW}, 3")
    e(f"v_lshrrev_b32 v{t0}, 3, v{vLane}")
    e(f"v_and_b32 v{t0}, 3, v{t0}")
    e(f"v_lshl_add_u32 v{t0}, v{vHh}, 4, v{t0}")
    e(f"v_lshrrev_b32 v{t1}, 4, v{vLane}")
    e(f"v_and_b32 v{t2}, 7, v{vLane}")
    e(f"v_xor_b32 v{t1}, v{t1}, v{t2}")
    e(f"s_lshl_b32 s52, s{sKh}, 5")
    e(f"s_lshl_b32 s53, s{sWt}, 2")
    e("s_add_u32 s52, s52, s53")
    e(f"s_lshl_b32 s53, s{sG}, 6")
    e("s_add_u32 s52, s52, s53")
    e(f"v_add_u32 v{vDA}, s52, v{t0}")
    e(f"v_lshlrev_b32 v{vDA}, 11, v{vDA}")
    e(f"s_and_b32 s53, s{sW}, 1")
    e("s_lshl_b32 s53, s53, 2")
    e(f"v_xor_b32 v{t2}, s53, v{t1}")
    e(f"v_lshl_add_u32 v{vDA}, v{t2}, 4, v{vDA}")
    for i in range(2):
        e(f"s_lshl_b32 s52, s{sC}, 7")
        e(f"s_lshl_b32 s53, s{sW}, 4")
        e("s_add_u32 s52, s52, s53")
        e(f"s_add_u32 s52, s52, {8*i}")
        e(f"v_lshrrev_b32 v{vDB+i}, 3, v{vLane}")
        e(f"v_add_u32 v{vDB+i}, s52, v{vDB+i}")
        e(f"v_lshlrev_b32 v{vDB+i}, 12, v{vDB+i}")
        e(f"v_xor_b32 v{t2}, {4*i}, v{t1}")
        e(f"v_lshl_add_u32 v{vDB+i}, v{t2}, 4, v{vDB+i}")
    e(f"s_lshl_b32 s{sM0A}, s{sW}, 10")
    e(f"s_lshl_b32 s{sM0B}, s{sW}, 11")
    e(f"s_add_u32 s{sM0B}, s{sM0B}, 8192")
    srd(SC, 84, 1024 * 1024 * 2)
    srd(SO, 90, 2048 * 1024 * 4)
    def setk2(j):
        e(f"s_add_u32 s{sKC}, s{sG}, {j>>1}")
        e(f"s_and_b32 s{sKC}, s{sKC}, 15")
        e(f"s_lshl_b32 s{sKC}, s{sKC}, 7")
        e(f"s_add_u32 s{sK}, s{sKC}, {(j&1)*2048}")
        e(f"s_mov_b32 s{SC}, s{84 + 2*(j&1)}")
        e(f"s_and_b32 s{SC+1}, s{85 + 2*(j&1)}, 0xffff")
    def dma2(i3, slot_imm=None):
        base = sM0A if i3 == 0 else sM0B
        off = 0 if i3 == 0 else (i3 - 1) * 1024
        if slot_imm is not None:
            e(f"s_add_u32 m0, s{base}, {slot_imm*SLOT + off}")
        else:
            e(f"s_add_u32 s61, s{base}, s{sWr}")
            e(f"s_add_u32 m0, s61, {off}")
        e("s_nop 0")
        if i3 == 0:
            e(f"buffer_load_dwordx4 v{vDA}, s[{SC}:{SC+3}], s{sKC} offen lds")
        else:
            e(f"buffer_load_dwordx4 v{vDB+i3-1}, s[{SH}:{SH+3}], s{sK} offen" + os.environ.get("HLD", " sc1") + " lds")
    e(f"v_lshrrev_b32 v{t0}, 1, v{vL31}")
    e(f"v_and_b32 v{t0}, 7, v{t0}")
    e(f"v_xor_b32 v{t0}, v{t0}, v{vHh}")
    e(f"s_lshl_b32 s52, s{sKh}, 2")
    for ks in range(2):
        e(f"s_add_u32 s53, s52, {2*ks}")
        e(f"v_xor_b32 v{t1}, s53, v{t0}")
        e(f"v_lshlrev_b32 v{t1}, 4, v{t1}")
        e(f"v_lshl_add_u32 v{vRA+ks}, v{vL31}, 7, v{t1}")
        e(f"s_lshl_b32 s53, s{sWt}, 12")
        e("s_add_u32 s53, s53, 8192")
        e(f"v_add_u32 v{vRB+ks}, s53, v{vRA+ks}")
    for i in range(32):
        e(f"v_mov_b32 v{vAcc+i}, 0")
    e(f"v_mov_b32 v{vOA}, v{vXO}")
    e("s_waitcnt vmcnt(4)")
    for p in range(2):
        e(f"v_lshlrev_b32 v{t2+2*p}, 16, v{vD+p}")
        e(f"v_and_b32 v{t2+2*p+1}, 0xffff0000, v{vD+p}")
    for p in range(8):
        e(f"v_lshlrev_b32 v{t0}, 16, v{vX+p}")
        e(f"v_and_b32 v{t1}, 0xffff0000, v{vX+p}")
        e(f"v_mul_f32 v{t0}, v{t0}, v{t2+2*(p&1)}")
        e(f"v_mul_f32 v{t1}, v{t1}, v{t2+2*(p&1)+1}")
        e(f"v_cvt_pk_bf16_f32 v{t0}, v{t0}, v{t1}")
        e(f"v_lshlrev_b32 v{vS+2*p}, 16, v{t0}")
        e(f"v_and_b32 v{vS+2*p+1}, 0xffff0000, v{t0}")
    e("s_waitcnt vmcnt(0)")
    e("s_mov_b64 exec, 1")
    e(f"buffer_store_dword v{vt1}, v{vt0}, s[{SH}:{SH+3}], 0 offen sc1")
    e("s_mov_b64 exec, -1")
    stamp(10)
    e("s_barrier")
    stamp(11)
    if os.environ.get("POLLFIRST", "0") == "1":
        e(f"s_cmp_lg_u32 s{sW}, 0")
        e("s_cbranch_scc1 K2_pf")
        e(f"v_lshlrev_b32 v{vT+4}, 3, v{vLane}")
        e(f"s_lshl_b32 s52, s{sC}, 9")
        e(f"s_add_u32 s52, s52, {HFL}")
        e(f"v_add_u32 v{vT+5}, s52, v{vT+4}")
        e(f"buffer_load_dwordx2 v[{vT+6}:{vT+7}], v{vT+5}, s[{SH}:{SH+3}], 0 offen sc1")
        e("K2_pf:")
    for st in range(2):
        setk2(st)
        dma2(0, st); dma2(1, st); dma2(2, st)
    for st in range(2, PF):
        setk2(st)
        dma2(0, st)
    stamp(12)
    e(f"s_cmp_lg_u32 s{sW}, 0")
    e("s_cbranch_scc1 K2_polldone")
    e(f"v_lshlrev_b32 v{vT+4}, 3, v{vLane}")
    e(f"s_lshl_b32 s52, s{sC}, 9")
    e(f"s_add_u32 s52, s52, {HFL}")
    e(f"v_add_u32 v{vT+5}, s52, v{vT+4}")
    e("s_mov_b32 s56, 0")
    e("K2_poll:")
    e(f"buffer_load_dwordx2 v[{vT+6}:{vT+7}], v{vT+5}, s[{SH}:{SH+3}], 0 offen sc1")
    e("s_add_u32 s56, s56, 1")
    e("s_waitcnt vmcnt(0)")
    e(f"v_cmp_ne_u32 vcc, 1, v{vT+6}")
    e(f"v_cmp_ne_u32 s[54:55], 1, v{vT+7}")
    e("s_or_b64 s[54:55], s[54:55], vcc")
    e("s_cbranch_scc0 K2_polldone")
    e("s_cmp_lt_u32 s56, 0x200000")
    e("s_cbranch_scc1 K2_poll")
    e("K2_polldone:")
    e("s_barrier")
    stamp(6)
    for st in range(2, PF):
        setk2(st)
        dma2(1, st); dma2(2, st)
    def rd2(va, vb, fb):
        r = []
        for mt in range(2):
            r.append(f"ds_read_b128 v[{fb+mt*4}:{fb+mt*4+3}], v{va} offset:{mt*4096}")
        r.append(f"ds_read_b128 v[{fb+8}:{fb+11}], v{vb}")
        return r
    def mf2(fb):
        r = []
        for mt in range(2):
            a = vAcc + mt * 16
            r.append(f"v_mfma_f32_32x32x16_bf16 v[{a}:{a+15}], v[{fb+mt*4}:{fb+mt*4+3}], v[{fb+8}:{fb+11}], v[{a}:{a+15}]")
        return r
    e(f"s_waitcnt vmcnt({2*(PF-2)})")
    e("s_barrier")
    stamp(7)
    for s_ in rd2(vRA, vRB, vFA): e(s_)
    e(f"s_mov_b32 s{sI}, 0")
    e(f"s_mov_b32 s{sRd}, 0")
    e(f"s_mov_b32 s{sRdN}, {SLOT}")
    e(f"s_mov_b32 s{sWr}, {PF*SLOT}")
    def book2(nxt_pf):
        e(f"s_mov_b32 s{sWr}, s{sRd}")
        e(f"s_mov_b32 s{sRd}, s{sRdN}")
        e(f"s_add_u32 s{sRdN}, s{sRdN}, {SLOT}")
        e(f"s_cmp_ge_u32 s{sRdN}, {NS*SLOT}")
        e(f"s_cselect_b32 s{sRdN}, 0, s{sRdN}")
        e(f"s_add_u32 s{sI}, s{sI}, 1")
        e(f"v_add_u32 v{vA1}, s{sRd}, v{vRA+1}")
        e(f"v_add_u32 v{vB1}, s{sRd}, v{vRB+1}")
        e(f"v_add_u32 v{vA0}, s{sRdN}, v{vRA}")
        e(f"v_add_u32 v{vB0}, s{sRdN}, v{vRB}")
        if nxt_pf:
            e(f"s_add_u32 s52, s{sI}, {PF}")
            e("s_lshr_b32 s53, s52, 1")
            e(f"s_add_u32 s{sKC}, s{sG}, s53")
            e(f"s_and_b32 s{sKC}, s{sKC}, 15")
            e(f"s_lshl_b32 s{sKC}, s{sKC}, 7")
            e("s_and_b32 s52, s52, 1")
            e("s_lshl_b32 s53, s52, 11")
            e(f"s_add_u32 s{sK}, s{sKC}, s53")
            e("s_cmp_eq_u32 s52, 0")
            e(f"s_cselect_b32 s{SC}, s84, s86")
            e(f"s_cselect_b32 s53, s85, s87")
            e(f"s_and_b32 s{SC+1}, s53, 0xffff")
    def body2(with_dma, wait):
        rB = rd2(vA1, vB1, vFB); mA = mf2(vFA)
        e(mA[0])
        for s_ in rB: e(s_)
        if with_dma: dma2(0)
        e(mA[1])
        for s_ in rd2(vA0, vB0, vFA): e(s_)
        if with_dma: dma2(1)
        e("s_waitcnt lgkmcnt(3)")
        mB = mf2(vFB)
        e(mB[0])
        if with_dma: dma2(2)
        book2(with_dma)
        e(mB[1])
        e(wait)
    e(f"v_add_u32 v{vA1}, s{sRd}, v{vRA+1}")
    e(f"v_add_u32 v{vB1}, s{sRd}, v{vRB+1}")
    e(f"v_add_u32 v{vA0}, s{sRdN}, v{vRA}")
    e(f"v_add_u32 v{vB0}, s{sRdN}, v{vRB}")
    setk2(PF)
    e("s_waitcnt lgkmcnt(0)")
    body2(True, "s_waitcnt vmcnt(7) lgkmcnt(0)")
    e("s_barrier")
    body2(True, "s_waitcnt vmcnt(8) lgkmcnt(0)")
    e("s_barrier")
    if os.environ.get("UNROLL", "0") == "1":
        for _ in range(NST - PF - 2):
            body2(True, f"s_waitcnt vmcnt({3*(PF-2)}) lgkmcnt(0)")
            e("s_barrier")
    else:
        e("K2_loop:")
        body2(True, f"s_waitcnt vmcnt({3*(PF-2)}) lgkmcnt(0)")
        e(f"s_cmp_lt_u32 s{sI}, {NST-PF}")
        e("s_barrier")
        e("s_cbranch_scc1 K2_loop")
    for j in range(PF):
        n = 3 * (PF - 3 - j)
        body2(False, f"s_waitcnt vmcnt({n}) lgkmcnt(0)" if n >= 0 else "s_waitcnt lgkmcnt(0)")
        e("s_barrier")
    stamp(8)
    vXW, vXR = vT, vT + 1
    RS = 272; PB = 128 * RS
    e(f"s_lshl_b32 s52, s{sWt}, 5")
    e(f"v_add_u32 v{vXW}, s52, v{vL31}")
    e(f"v_mul_u32_u24 v{vXW}, {RS}, v{vXW}")
    e(f"v_lshl_add_u32 v{vXW}, v{vHh}, 6, v{vXW}")
    e(f"s_mul_i32 s52, s{sKh}, {PB}")
    e(f"v_add_u32 v{vXW}, s52, v{vXW}")
    e(f"v_lshrrev_b32 v{vXR}, 4, v{vLane}")
    e(f"s_lshl_b32 s52, s{sW}, 4")
    e(f"v_add_u32 v{vXR}, s52, v{vXR}")
    e(f"v_mul_u32_u24 v{vXR}, {RS}, v{vXR}")
    e(f"v_and_b32 v{vT+2}, 15, v{vLane}")
    e(f"v_lshl_add_u32 v{vXR}, v{vT+2}, 4, v{vXR}")
    e("s_nop 4")
    for mt in range(2):
        for i in range(4):
            e(f"ds_write_b128 v{vXW}, v[{vAcc+mt*16+i*4}:{vAcc+mt*16+i*4+3}] offset:{mt*128+i*16}")
    e("s_waitcnt lgkmcnt(0)")
    e("s_barrier")
    for i in range(4):
        e(f"ds_read_b128 v[{vR+i*4}:{vR+i*4+3}], v{vXR} offset:{i*4*RS}")
        e(f"ds_read_b128 v[{vFA+i*4}:{vFA+i*4+3}], v{vXR} offset:{PB+i*4*RS}")
    for i in range(4):
        e(f"s_waitcnt lgkmcnt({6-2*i})")
        for k in range(4):
            e(f"v_add_f32 v{vR+i*4+k}, v{vR+i*4+k}, v{vFA+i*4+k}")
            e(f"v_add_f32 v{vR+i*4+k}, v{vR+i*4+k}, v{vS+i*4+k}")
        e(f"buffer_store_dwordx4 v[{vR+i*4}:{vR+i*4+3}], v{vOA}, s[{SO}:{SO+3}], 0 offen")
        if i < 3: e(f"v_add_u32 v{vOA}, 16384, v{vOA}")
    stamp(9)
    if STAMP:
        e(f"s_cmp_lg_u32 s{sW}, 0")
        e(f"s_cbranch_scc1 KF_done")
        e("s_mov_b64 exec, 1")
        e(f"s_lshl_b32 s62, s2, 6")
        e(f"s_add_u32 s62, s62, {STB}")
        e(f"v_mov_b32 v{vT}, s62")
        e(f"v_mov_b32 v{vT+2}, 128")
        for i in range(13):
            e(f"v_mov_b32 v{vT+1}, s{70+i}")
            e(f"buffer_store_dword v{vT+1}, v{vT}, s[{SH}:{SH+3}], 0 offen offset:{4*i}")
            e("s_cmp_lg_u32 s2, 100")
            e(f"s_cbranch_scc1 SK{i}")
            e(f"buffer_store_dword v{vT+1}, v{vT+2}, s[{SD}:{SD+3}], 0 offen offset:{4*i}")
            e(f"SK{i}:")
    e("KF_done:")
    e("s_endpgm")

gen()
out = HDR + "\n".join(L) + f"""
.section .rodata,"a"
.p2align 6
.amdhsa_kernel {KN}
  .amdhsa_next_free_vgpr 256
  .amdhsa_next_free_sgpr 96
  .amdhsa_accum_offset 256
  .amdhsa_group_segment_fixed_size 0
  .amdhsa_kernarg_size 96
  .amdhsa_user_sgpr_count 2
  .amdhsa_user_sgpr_kernarg_segment_ptr 1
  .amdhsa_system_sgpr_workgroup_id_x 1
  .amdhsa_float_denorm_mode_32 3
.end_amdhsa_kernel
"""
path = sys.argv[1] if len(sys.argv) > 1 else "standalone__ssm_conv_s5__prompt.s"
open(path, "w").write(out)
print("wrote", path, len(out), "bytes")
```

```python
import sys, os, struct

L = []
STAMP = os.environ.get("STAMP", "0") == "1"
ROT = int(os.environ.get("ROT", "15"))
TOUCH = os.environ.get("TOUCH", "0") == "1"
def e(s=""):
    L.append("    " + s if s and not s.endswith(":") and not s.startswith(".") and not s.startswith(";") else s)

LOG2E = 0x3fb8aa3b
INV2PI = 0x3e22f983
AGG = 8 * 1024 * 1024
HFL = AGG + 131072
STB = HFL + 8192
KN = "standalone__ssm_conv_s5__prompt_kernel"

HDR = """; Kernarg layout (96 bytes): x, Lambda_re, Lambda_im, B_re, B_im, C_re, C_im, log_dt, Dskip, out, debug, ws
; @launch grid=(256,1,1) block=(512,1,1) lds=163840
.amdgcn_target "amdgcn-amd-amdhsa--gfx950"
.text
"""

def srd(d, base, size):
    e(f"s_mov_b32 s{d}, s{base}")
    e(f"s_and_b32 s{d+1}, s{base+1}, 0xffff")
    e(f"s_mov_b32 s{d+2}, {size}")
    e(f"s_mov_b32 s{d+3}, 0x00020000")

def stamp(n):
    if STAMP:
        e(f"s_memrealtime s[62:63]")
        e("s_waitcnt lgkmcnt(0)")
        e(f"s_mov_b32 s{70+n}, s62")

def lam_params(vch, out, tmp, sLre, sLim, sLdt, want):
    e(f"v_lshlrev_b32 v{tmp+3}, 1, v{vch}")
    e(f"global_load_ushort v{tmp}, v{tmp+3}, s[{sLre}:{sLre+1}]")
    e(f"global_load_ushort v{tmp+1}, v{tmp+3}, s[{sLim}:{sLim+1}]")
    e(f"global_load_ushort v{tmp+2}, v{tmp+3}, s[{sLdt}:{sLdt+1}]")
    def compute():
        lre, lim, ldt = tmp, tmp + 1, tmp + 2
        a, b, c, d, f, g = tmp + 3, tmp + 4, tmp + 5, tmp + 6, tmp + 7, tmp + 8
        e(f"v_lshlrev_b32 v{lre}, 16, v{lre}")
        e(f"v_lshlrev_b32 v{lim}, 16, v{lim}")
        e(f"v_lshlrev_b32 v{ldt}, 16, v{ldt}")
        e(f"v_mul_f32 v{a}, {LOG2E:#x}, v{ldt}")
        e(f"v_exp_f32 v{a}, v{a}")
        e("s_nop 0")
        e(f"v_cvt_pk_bf16_f32 v{a}, v{a}, v{a}")
        e(f"v_lshlrev_b32 v{a}, 16, v{a}")
        e(f"v_mul_f32 v{b}, v{a}, v{lre}")
        e(f"v_mul_f32 v{c}, v{a}, v{lim}")
        e(f"v_mul_f32 v{b}, {LOG2E:#x}, v{b}")
        e(f"v_mul_f32 v{c}, {INV2PI:#x}, v{c}")
        for nm, n in (("l1", 1.0), ("l16", 16.0), ("l128", 128.0)):
            if nm + "r" not in want and not (nm == "l1" and "s2r" in want):
                continue
            rr = out.get(nm + "r", tmp + 9); ii = out.get(nm + "i", tmp + 10)
            nb = struct.unpack("<I", struct.pack("<f", n))[0]
            e(f"v_mul_f32 v{d}, {nb:#x}, v{b}")
            e(f"v_mul_f32 v{f}, {nb:#x}, v{c}")
            e(f"v_exp_f32 v{d}, v{d}")
            e(f"v_fract_f32 v{f}, v{f}")
            e(f"v_cos_f32 v{g}, v{f}")
            e(f"v_sin_f32 v{f}, v{f}")
            e("s_nop 0")
            e(f"v_mul_f32 v{rr}, v{d}, v{g}")
            e(f"v_mul_f32 v{ii}, v{d}, v{f}")
            if nm == "l1" and "s2r" in want:
                e(f"v_add_f32 v{d}, -1.0, v{rr}")
                e(f"v_mul_f32 v{f}, v{lre}, v{lre}")
                e(f"v_fma_f32 v{f}, v{lim}, v{lim}, v{f}")
                e(f"v_rcp_f32 v{f}, v{f}")
                e(f"v_mul_f32 v{g}, v{d}, v{lre}")
                e(f"v_fma_f32 v{g}, v{ii}, v{lim}, v{g}")
                e(f"v_mul_f32 v{a}, v{ii}, v{lre}")
                e(f"v_fma_f32 v{a}, -v{d}, v{lim}, v{a}")
                e(f"v_add_f32 v{f}, v{f}, v{f}")
                e(f"v_mul_f32 v{out['s2r']}, v{g}, v{f}")
                e(f"v_mul_f32 v{out['s2i']}, v{a}, v{f}")
    return compute

def cmad(hr, hi, lr, li, br, bi, t0, t1):
    e(f"v_fma_f32 v{t0}, v{lr}, v{hr}, v{br}")
    e(f"v_fma_f32 v{t1}, v{lr}, v{hi}, v{bi}")
    e(f"v_fma_f32 v{t0}, -v{li}, v{hi}, v{t0}")
    e(f"v_fma_f32 v{hi}, v{li}, v{hr}, v{t1}")
    e(f"v_mov_b32 v{hr}, v{t0}")

def gen():
    e(f".globl {KN}")
    e(".p2align 8")
    e(f".type {KN},@function")
    e(f"{KN}:")
    e("s_cmp_ge_u32 s2, 256")
    e("s_cbranch_scc1 KF_done")
    e("s_load_dwordx4 s[4:7], s[0:1], 0")
    e("s_load_dwordx4 s[8:11], s[0:1], 16")
    e("s_load_dwordx2 s[12:13], s[0:1], 32")
    e("s_load_dwordx2 s[14:15], s[0:1], 56")
    e("s_load_dwordx4 s[16:19], s[0:1], 80")
    e("s_load_dwordx4 s[84:87], s[0:1], 40")
    e("s_load_dwordx4 s[88:91], s[0:1], 64")
    NS = 5; SLOT = 32768; NST = 16; PF = 4
    sC, sG, sW, sKh, sWm, sWn, sT2, sK, sM0A, sM0B = 40, 41, 42, 43, 44, 45, 46, 47, 48, 49
    sI, sRd, sRdN, sWr = 36, 37, 38, 39
    sHF = 58
    SX, SB, SH, SD = 20, 24, 28, 32
    e("s_and_b32 s3, s2, 7")
    e("s_lshr_b32 s60, s2, 3")
    e("s_lshr_b32 s52, s3, 1")
    e("s_lshl_b32 s52, s52, 2")
    e("s_lshr_b32 s53, s60, 3")
    e(f"s_add_u32 s{sC}, s52, s53")
    e("s_and_b32 s52, s3, 1")
    e("s_lshl_b32 s52, s52, 3")
    e("s_and_b32 s53, s60, 7")
    e(f"s_add_u32 s{sG}, s52, s53")
    e(f"s_and_b32 s60, s60, {ROT}")
    vLane = 1; vL31 = 2; vHh = 3
    vDA = 4; vDB = 6
    vRA = 8; vRB = 10
    vA0, vB0, vA1, vB1 = 12, 13, 14, 15
    vP = 20; vQ = 26
    vT = 30; vT2 = 48
    vFA = 64; vFB = 80
    vAcc = 96
    vR = 160
    vE = 192
    e(f"v_and_b32 v{vLane}, 63, v0")
    e(f"v_lshrrev_b32 v{vT}, 6, v0")
    e("s_nop 0")
    e(f"v_readfirstlane_b32 s{sW}, v{vT}")
    e(f"v_and_b32 v{vL31}, 31, v0")
    e(f"v_lshrrev_b32 v{vHh}, 5, v{vLane}")
    t0, t1, t2 = vE, vE + 1, vE + 2
    e(f"v_lshrrev_b32 v{t0}, 3, v{vLane}")
    e(f"v_and_b32 v{t0}, 3, v{t0}")
    e(f"v_lshl_add_u32 v{t0}, v{vHh}, 4, v{t0}")
    e(f"v_lshrrev_b32 v{t1}, 4, v{vLane}")
    e(f"v_and_b32 v{t2}, 7, v{vLane}")
    e(f"v_xor_b32 v{t1}, v{t1}, v{t2}")
    e(f"s_lshr_b32 s{sKh}, s{sW}, 2")
    e(f"s_lshr_b32 s{sWm}, s{sW}, 1")
    e(f"s_and_b32 s{sWm}, s{sWm}, 1")
    e(f"s_and_b32 s{sWn}, s{sW}, 1")
    e(f"s_lshl_b32 s{sT2}, s{sWm}, 1")
    e(f"s_add_u32 s{sT2}, s{sT2}, s{sKh}")
    e(f"s_lshl_b32 s{sT2}, s{sT2}, 1")
    for i in range(2):
        e(f"s_lshl_b32 s52, s{sW}, 1")
        e(f"s_add_u32 s52, s52, {i}")
        e("s_lshr_b32 s53, s52, 2")
        e("s_lshl_b32 s53, s53, 5")
        e("s_and_b32 s52, s52, 3")
        e("s_lshl_b32 s52, s52, 2")
        e("s_add_u32 s52, s52, s53")
        e(f"s_lshl_b32 s53, s{sC}, 7")
        e("s_add_u32 s52, s52, s53")
        e(f"v_add_u32 v{vDA+i}, s52, v{t0}")
        e(f"v_lshlrev_b32 v{vDA+i}, 11, v{vDA+i}")
        e(f"v_xor_b32 v{t2}, {4*i}, v{t1}")
        e(f"v_lshl_add_u32 v{vDA+i}, v{t2}, 4, v{vDA+i}")
        e(f"s_lshl_b32 s52, s{sG}, 6")
        e(f"s_lshl_b32 s53, s{sKh}, 5")
        e("s_add_u32 s52, s52, s53")
        e(f"s_lshl_b32 s53, s{sWn}, 4")
        e("s_add_u32 s52, s52, s53")
        e(f"s_add_u32 s52, s52, {8*i}")
        e(f"v_lshrrev_b32 v{vDB+i}, 3, v{vLane}")
        e(f"v_add_u32 v{vDB+i}, s52, v{vDB+i}")
        e(f"v_lshlrev_b32 v{vDB+i}, 11, v{vDB+i}")
        e(f"v_lshl_add_u32 v{vDB+i}, v{t2}, 4, v{vDB+i}")
    e(f"s_lshl_b32 s{sM0A}, s{sW}, 11")
    e(f"s_add_u32 s{sM0B}, s{sM0A}, 16384")
    e("s_waitcnt lgkmcnt(0)")
    stamp(0)
    srd(SX, 4, 2048 * 1024 * 2)
    e(f"s_cmp_eq_u32 s{sWm}, 0")
    e("s_cselect_b32 s52, s10, s12")
    e("s_cselect_b32 s53, s11, s13")
    srd(SB, 52, 1024 * 1024 * 2)
    def setk_imm(st):
        e(f"s_add_u32 s{sK}, s60, {st}")
        e(f"s_and_b32 s{sK}, s{sK}, 15")
        e(f"s_lshl_b32 s{sK}, s{sK}, 7")
    def dma(i4, slot_imm=None):
        base = sM0A if i4 < 2 else sM0B
        off = (i4 % 2) * 1024
        if slot_imm is not None:
            e(f"s_add_u32 m0, s{base}, {slot_imm*SLOT + off}")
        else:
            e(f"s_add_u32 s61, s{base}, s{sWr}")
            e(f"s_add_u32 m0, s61, {off}")
        e("s_nop 0")
        if i4 < 2:
            e(f"buffer_load_dwordx4 v{vDA+i4}, s[{SX}:{SX+3}], s{sK} offen lds")
        else:
            e(f"buffer_load_dwordx4 v{vDB+i4-2}, s[{SB}:{SB+3}], s{sK} offen lds")
    e(f"s_lshl_b32 s52, s{sG}, 6")
    e(f"s_lshl_b32 s53, s{sWn}, 5")
    e("s_add_u32 s53, s53, s52")
    e(f"v_add_u32 v{vT+12}, s53, v{vL31}")
    e(f"v_add_u32 v{vT2+12}, s52, v{vLane}")
    cp1 = lam_params(vT + 12, dict(l1r=vP, l1i=vP+1, l16r=vP+2, l16i=vP+3, s2r=vP+4, s2i=vP+5), vT, 6, 8, 14,
                     {"l1r", "l16r", "s2r"})
    cp2 = lam_params(vT2 + 12, dict(l16r=vQ, l16i=vQ+1, l128r=vQ+2, l128i=vQ+3), vT2, 6, 8, 14, {"l16r", "l128r"})
    for st in range(PF):
        setk_imm(st)
        for i4 in range(4):
            dma(i4, st)
    srd(SH, 18, STB + (65536 if STAMP else 0))
    srd(SD, 16, 256)
    e(f"s_lshl_b32 s52, s{sC}, 4")
    e(f"s_add_u32 s54, s52, s{sG}")
    e("s_lshl_b32 s52, s54, 9")
    e(f"s_add_u32 s52, s52, {AGG}")
    e(f"s_lshl_b32 s53, s{sW}, 6")
    e("s_add_u32 s52, s52, s53")
    e(f"v_lshlrev_b32 v{vE+3}, 2, v{vLane}")
    e(f"v_add_u32 v{vE+3}, s52, v{vE+3}")
    e(f"v_mov_b32 v{vE+4}, -1")
    e("s_lshl_b32 s52, s54, 3")
    e(f"s_add_u32 s52, s52, s{sW}")
    e("s_lshl_b32 s52, s52, 2")
    e(f"s_add_u32 s{sHF}, s52, {HFL}")
    e("s_mov_b64 exec, 0x10000")
    e(f"v_mov_b32 v{vE+3}, s{sHF}")
    e("s_mov_b64 exec, 0x1ffff")
    e(f"buffer_store_dword v{vE+4}, v{vE+3}, s[{SH}:{SH+3}], 0 offen sc1")
    e("s_mov_b64 exec, -1")
    if TOUCH:
        e(f"v_lshrrev_b32 v{vE+3}, 4, v{vLane}")
        e(f"v_and_b32 v{vE+4}, 15, v{vLane}")
        e(f"s_and_b32 s52, s{sG}, 7")
        e("s_lshl_b32 s52, s52, 4")
        e(f"s_and_b32 s53, s{sW}, 3")
        e("s_lshl_b32 s53, s53, 2")
        e("s_add_u32 s52, s52, s53")
        e(f"s_lshl_b32 s53, s{sC}, 7")
        e("s_add_u32 s52, s52, s53")
        e(f"v_add_u32 v{vE+5}, s52, v{vE+3}")
        e(f"v_lshlrev_b32 v{vE+5}, 11, v{vE+5}")
        e(f"v_lshl_add_u32 v{vE+5}, v{vE+4}, 7, v{vE+5}")
        e(f"global_load_dword v{vE+30}, v{vE+5}, s[4:5]")
        e(f"s_and_b32 s52, s{sC}, 3")
        e("s_lshl_b32 s52, s52, 4")
        e(f"s_lshr_b32 s53, s{sW}, 1")
        e("s_lshl_b32 s53, s53, 2")
        e("s_add_u32 s52, s52, s53")
        e(f"s_lshl_b32 s53, s{sG}, 6")
        e("s_add_u32 s52, s52, s53")
        e(f"v_add_u32 v{vE+5}, s52, v{vE+3}")
        e(f"v_lshlrev_b32 v{vE+5}, 11, v{vE+5}")
        e(f"v_lshl_add_u32 v{vE+5}, v{vE+4}, 7, v{vE+5}")
        e(f"s_cmp_eq_u32 s{sWn}, 0")
        e("s_cselect_b32 s52, s10, s12")
        e("s_cselect_b32 s53, s11, s13")
        e(f"global_load_dword v{vE+30}, v{vE+5}, s[52:53]")
    e(f"v_lshrrev_b32 v{t0}, 1, v{vL31}")
    e(f"v_and_b32 v{t0}, 7, v{t0}")
    e(f"v_xor_b32 v{t0}, v{t0}, v{vHh}")
    e(f"s_lshl_b32 s52, s{sKh}, 2")
    for ks in range(2):
        e(f"s_add_u32 s53, s52, {2*ks}")
        e(f"v_xor_b32 v{t1}, s53, v{t0}")
        e(f"v_lshlrev_b32 v{t1}, 4, v{t1}")
        e(f"v_lshl_add_u32 v{t1}, v{vL31}, 7, v{t1}")
        e(f"s_lshl_b32 s53, s{sWm}, 13")
        e(f"v_add_u32 v{vRA+ks}, s53, v{t1}")
        e(f"s_lshl_b32 s53, s{sWn}, 13")
        e("s_add_u32 s53, s53, 16384")
        e(f"v_add_u32 v{vRB+ks}, s53, v{t1}")
    for i in range(64):
        e(f"v_mov_b32 v{vAcc+i}, 0")
    e(f"s_waitcnt vmcnt({19 if TOUCH else 17})")
    cp1(); cp2()
    e(f"s_waitcnt vmcnt({11 if TOUCH else 9})")
    def rd(va, vb, fb):
        r = []
        for mt in range(2):
            r.append(f"ds_read_b128 v[{fb+mt*4}:{fb+mt*4+3}], v{va} offset:{mt*4096}")
        for nt in range(2):
            r.append(f"ds_read_b128 v[{fb+8+nt*4}:{fb+8+nt*4+3}], v{vb} offset:{nt*4096}")
        return r
    def mf(fb):
        r = []
        for mt in range(2):
            for nt in range(2):
                a = vAcc + (mt * 2 + nt) * 16
                r.append(f"v_mfma_f32_32x32x16_bf16 v[{a}:{a+15}], v[{fb+mt*4}:{fb+mt*4+3}], v[{fb+8+nt*4}:{fb+8+nt*4+3}], v[{a}:{a+15}]")
        return r
    e("s_barrier")
    stamp(1)
    for s_ in rd(vRA, vRB, vFA): e(s_)
    e(f"s_mov_b32 s{sI}, 0")
    e(f"s_mov_b32 s{sRd}, 0")
    e(f"s_mov_b32 s{sRdN}, {SLOT}")
    e(f"s_mov_b32 s{sWr}, {PF*SLOT}")
    def book(nxt_pf):
        e(f"s_mov_b32 s{sWr}, s{sRd}")
        e(f"s_mov_b32 s{sRd}, s{sRdN}")
        e(f"s_add_u32 s{sRdN}, s{sRdN}, {SLOT}")
        e(f"s_cmp_ge_u32 s{sRdN}, {NS*SLOT}")
        e(f"s_cselect_b32 s{sRdN}, 0, s{sRdN}")
        e(f"s_add_u32 s{sI}, s{sI}, 1")
        e(f"v_add_u32 v{vA1}, s{sRd}, v{vRA+1}")
        e(f"v_add_u32 v{vB1}, s{sRd}, v{vRB+1}")
        e(f"v_add_u32 v{vA0}, s{sRdN}, v{vRA}")
        e(f"v_add_u32 v{vB0}, s{sRdN}, v{vRB}")
        if nxt_pf:
            e(f"s_add_u32 s{sK}, s{sK}, 128")
            e(f"s_and_b32 s{sK}, s{sK}, 2047")
    def body(with_dma, wait):
        rB = rd(vA1, vB1, vFB); mA = mf(vFA)
        e(mA[0]); e(rB[0]); e(rB[1])
        e(mA[1]); e(rB[2]); e(rB[3])
        if with_dma: dma(0)
        e(mA[2])
        if with_dma: dma(1)
        e(mA[3])
        for s_ in rd(vA0, vB0, vFA): e(s_)
        e("s_waitcnt lgkmcnt(4)")
        mB = mf(vFB)
        e(mB[0])
        if with_dma: dma(2)
        e(mB[1])
        if with_dma: dma(3)
        e(mB[2])
        book(with_dma)
        e(mB[3])
        e(wait)
    e(f"v_add_u32 v{vA1}, s{sRd}, v{vRA+1}")
    e(f"v_add_u32 v{vB1}, s{sRd}, v{vRB+1}")
    e(f"v_add_u32 v{vA0}, s{sRdN}, v{vRA}")
    e(f"v_add_u32 v{vB0}, s{sRdN}, v{vRB}")
    setk_imm(PF)
    e("s_waitcnt lgkmcnt(0)")
    for _ in range(2):
        body(True, "s_waitcnt vmcnt(8) lgkmcnt(0)")
        e("s_barrier")
    e(f"s_lshl_b32 s52, 1, s{sC}")
    e(f"v_mov_b32 v{t0}, s52")
    e(f"s_lshl_b32 s53, s{sG}, 2")
    e(f"v_mov_b32 v{t1}, s53")
    e(f"s_cmp_lg_u32 s{sW}, 0")
    e("s_cbranch_scc1 K1_noflag")
    e("s_mov_b64 exec, 1")
    e(f"buffer_atomic_or v{t0}, v{t1}, s[{SD}:{SD+3}], 0 offen sc1")
    e("s_mov_b64 exec, -1")
    e("K1_noflag:")
    if os.environ.get("UNROLL", "0") == "1":
        for _ in range(NST - PF - 2):
            body(True, "s_waitcnt vmcnt(8) lgkmcnt(0)")
            e("s_barrier")
    else:
        e("K1_loop:")
        body(True, "s_waitcnt vmcnt(8) lgkmcnt(0)")
        e(f"s_cmp_lt_u32 s{sI}, {NST-PF}")
        e("s_barrier")
        e("s_cbranch_scc1 K1_loop")
    def warmup():
        e(f"s_cmp_lt_u32 s{sW}, 4")
        e("s_cselect_b32 s54, s84, s86")
        e("s_cselect_b32 s55, s85, s87")
        e(f"s_and_b32 s52, s{sC}, 3")
        e("s_lshl_b32 s52, s52, 4")
        e(f"s_and_b32 s53, s{sW}, 3")
        e("s_lshl_b32 s53, s53, 2")
        e("s_add_u32 s52, s52, s53")
        e(f"s_lshl_b32 s53, s{sG}, 6")
        e("s_add_u32 s52, s52, s53")
        e(f"v_lshrrev_b32 v{t0}, 4, v{vLane}")
        e(f"v_add_u32 v{t0}, s52, v{t0}")
        e(f"v_lshlrev_b32 v{t0}, 11, v{t0}")
        e(f"v_and_b32 v{t1}, 15, v{vLane}")
        e(f"v_lshl_add_u32 v{t0}, v{t1}, 7, v{t0}")
        if os.environ.get("WARM", "1") == "1":
            e(f"global_load_dword v{vE+30}, v{t0}, s[54:55]")
    for wi, wt in enumerate(("s_waitcnt vmcnt(4) lgkmcnt(0)", "s_waitcnt vmcnt(0) lgkmcnt(0)", "s_waitcnt lgkmcnt(0)", "s_waitcnt lgkmcnt(0)")):
        if wi == 2:
            warmup()
            if os.environ.get("OTLB", "0") == "1":
                e(f"s_lshl_b32 s52, s{sC}, 7")
                e(f"s_lshl_b32 s53, s{sW}, 4")
                e("s_add_u32 s52, s52, s53")
                e(f"v_and_b32 v{t0}, 15, v{vLane}")
                e(f"v_add_u32 v{t0}, s52, v{t0}")
                e(f"v_lshlrev_b32 v{t0}, 12, v{t0}")
                e(f"s_lshl_b32 s53, s{sG}, 8")
                e(f"v_add_u32 v{t0}, s53, v{t0}")
                e(f"global_load_dword v{vE+30}, v{t0}, s[90:91]")
        body(False, wt)
        e("s_barrier")
    stamp(2)
    if os.environ.get("PADT"):
        for i in range(256):
            e(f"v_add_f32_{os.environ['PADT']} v{200+(i%8)}, v{200+(i%8)}, v{200+(i%8)}")
    EB = 0; HB = EB + 8192; XB = 12288; TB = 77824
    vXW = vE; vXR = vE + 1; vFl = vE + 2; vFa = vE + 3; vEr = vE + 4; vEi = vE + 5; vt0 = vE + 6; vt1 = vE + 7
    vES = vE + 8
    vHr = vE + 24; vHi = vE + 25; vE2 = vE + 26
    vAd = vE + 28
    e(f"v_and_b32 v{vFa}, 15, v{vLane}")
    e(f"v_lshlrev_b32 v{vFa}, 2, v{vFa}")
    e(f"buffer_load_dword v{vFl}, v{vFa}, s[{SD}:{SD+3}], 0 offen sc1")
    e(f"v_lshlrev_b32 v{vXW}, 4, v{vLane}")
    e(f"s_lshl_b32 s52, s{sW}, 13")
    e(f"s_xor_b32 s53, s52, {4<<13}")
    e(f"s_add_u32 s52, s52, {XB}")
    e(f"s_add_u32 s53, s53, {XB}")
    e(f"v_add_u32 v{vXR}, s53, v{vXW}")
    e(f"v_add_u32 v{vXW}, s52, v{vXW}")
    lr, li = vP, vP + 1
    vEa = vR; vEb = vR + 2; tA0 = vR + 4; tA1 = vR + 5; tB0 = vR + 6; tB1 = vR + 7
    e("s_nop 4")
    e(f"v_mov_b32 v{vEa}, v{vAcc}")
    e(f"v_mov_b32 v{vEa+1}, v{vAcc+16}")
    e(f"v_mov_b32 v{vEb}, v{vAcc+32}")
    e(f"v_mov_b32 v{vEb+1}, v{vAcc+48}")
    for q in range(1, 16):
        e(f"v_fma_f32 v{tA0}, v{lr}, v{vEa}, v{vAcc+q}")
        e(f"v_fma_f32 v{tB0}, v{lr}, v{vEb}, v{vAcc+32+q}")
        e(f"v_fma_f32 v{tA1}, v{lr}, v{vEa+1}, v{vAcc+16+q}")
        e(f"v_fma_f32 v{tB1}, v{lr}, v{vEb+1}, v{vAcc+48+q}")
        e(f"v_fma_f32 v{tA0}, -v{li}, v{vEa+1}, v{tA0}")
        e(f"v_fma_f32 v{tB0}, -v{li}, v{vEb+1}, v{tB0}")
        e(f"v_fma_f32 v{vEa+1}, v{li}, v{vEa}, v{tA1}")
        e(f"v_fma_f32 v{vEb+1}, v{li}, v{vEb}, v{tB1}")
        e(f"v_mov_b32 v{vEa}, v{tA0}")
        e(f"v_mov_b32 v{vEb}, v{tB0}")
    e(f"s_lshl_b32 s52, s{sWm}, 2")
    e(f"v_add_u32 v{vAd}, s52, v{vHh}")
    e(f"v_lshlrev_b32 v{vAd}, 9, v{vAd}")
    e(f"v_lshl_add_u32 v{vAd}, v{vL31}, 3, v{vAd}")
    e(f"s_lshl_b32 s52, s{sWn}, 8")
    e(f"s_lshl_b32 s53, s{sKh}, 12")
    e("s_add_u32 s52, s52, s53")
    e(f"v_add_u32 v{vAd}, s52, v{vAd}")
    e(f"ds_write_b64 v{vAd}, v[{vEa}:{vEa+1}] offset:{EB}")
    e(f"ds_write_b64 v{vAd}, v[{vEb}:{vEb+1}] offset:{EB+1024}")
    e(f"s_cmp_eq_u32 s{sKh}, 0")
    e("s_cbranch_scc0 K1_w1")
    for i in range(8):
        e(f"ds_write_b128 v{vXW}, v[{vAcc+32+i*4}:{vAcc+32+i*4+3}] offset:{i*1024}")
    e("s_branch K1_wd")
    e("K1_w1:")
    for i in range(8):
        e(f"ds_write_b128 v{vXW}, v[{vAcc+i*4}:{vAcc+i*4+3}] offset:{i*1024}")
    e("K1_wd:")
    e("s_waitcnt lgkmcnt(0)")
    e("s_barrier")
    def exch_read(tag):
        for i in range(8):
            e(f"ds_read_b128 v[{vR+i*4}:{vR+i*4+3}], v{vXR} offset:{i*1024}")
        e("s_waitcnt lgkmcnt(0)")
        e(f"s_cmp_eq_u32 s{sKh}, 0")
        e(f"s_cbranch_scc0 K1_a1{tag}")
        for i in range(32):
            e(f"v_add_f32 v{vR+i}, v{vR+i}, v{vAcc+i}")
        e(f"s_branch K1_ad{tag}")
        e(f"K1_a1{tag}:")
        for i in range(32):
            e(f"v_add_f32 v{vR+i}, v{vR+i}, v{vAcc+32+i}")
        e(f"K1_ad{tag}:")
    stamp(3)
    e(f"s_cmp_eq_u32 s{sW}, 0")
    e("s_cbranch_scc1 K1_lb")
    exch_read("x")
    e("s_branch K1_lbdone")
    e("K1_lb:")
    e(f"v_lshlrev_b32 v{vAd}, 3, v{vLane}")
    for s_ in range(8):
        e(f"ds_read_b64 v[{vES+2*s_}:{vES+2*s_+1}], v{vAd} offset:{EB+s_*512}")
        e(f"ds_read_b64 v[{vR+2*s_}:{vR+2*s_+1}], v{vAd} offset:{EB+4096+s_*512}")
    e("s_waitcnt lgkmcnt(0)")
    for s_ in range(16):
        e(f"v_add_f32 v{vES+s_}, v{vES+s_}, v{vR+s_}")
    for s_ in range(1, 8):
        cmad(vES, vES + 1, vQ, vQ + 1, vES + 2 * s_, vES + 2 * s_ + 1, vt0, vt1)
    e(f"s_lshl_b32 s52, s{sC}, 4")
    e(f"s_add_u32 s52, s52, s{sG}")
    e("s_lshl_b32 s52, s52, 9")
    e(f"s_add_u32 s52, s52, {AGG}")
    e(f"v_add_u32 v{vt0}, s52, v{vAd}")
    e(f"buffer_store_dwordx2 v[{vES}:{vES+1}], v{vt0}, s[{SH}:{SH+3}], 0 offen sc1")
    exch_read("z")
    e(f"v_mov_b32 v{vHr}, 0")
    e(f"v_mov_b32 v{vHi}, 0")
    e(f"s_lshl_b32 s57, 1, s{sC}")
    e("s_sub_u32 s52, s57, 1")
    e("s_mov_b32 s56, 0")
    e("s_waitcnt vmcnt(1)")
    e("K1_poll:")
    e(f"v_readlane_b32 s53, v{vFl}, s{sG}")
    e(f"v_and_b32 v{vt0}, s57, v{vFl}")
    e(f"v_cmp_eq_u32 vcc, 0, v{vt0}")
    e("s_and_b32 s53, s53, s52")
    e("s_cmp_eq_u32 s53, s52")
    e("s_cbranch_scc0 K1_pollagain")
    e("s_cmp_eq_u64 vcc, 0")
    e("s_cbranch_scc1 K1_polldone")
    e("K1_pollagain:")
    e(f"buffer_load_dword v{vFl}, v{vFa}, s[{SD}:{SD+3}], 0 offen sc1")
    e("s_add_u32 s56, s56, 1")
    e("s_waitcnt vmcnt(0)")
    e("s_cmp_lt_u32 s56, 0x200000")
    e("s_cbranch_scc1 K1_poll")
    e("K1_polldone:")
    e(f"s_cmp_eq_u32 s{sC}, 0")
    e("s_cbranch_scc1 K1_nogather")
    e(f"s_lshl_b32 s52, s{sG}, 9")
    e(f"s_add_u32 s52, s52, {AGG}")
    e(f"v_add_u32 v{vFl}, s52, v{vAd}")
    e("s_mov_b32 s56, 0")
    e("K1_round:")
    for cp in range(15):
        e(f"s_mov_b32 s53, {cp*8192}")
        e(f"buffer_load_dwordx2 v[{vAcc+2*cp}:{vAcc+2*cp+1}], v{vFl}, s[{SH}:{SH+3}], s53 offen sc1")
    e("s_add_u32 s56, s56, 1")
    e("s_cmp_ge_u32 s56, 0x100000")
    e("s_waitcnt vmcnt(0)")
    e("s_cbranch_scc1 K1_allvalid")
    for cp in range(15):
        e(f"s_cmp_le_u32 s{sC}, {cp}")
        e("s_cbranch_scc1 K1_allvalid")
        e(f"v_cmp_eq_u32 vcc, -1, v{vAcc+2*cp}")
        e(f"v_cmp_eq_u32 s[54:55], -1, v{vAcc+2*cp+1}")
        e("s_or_b64 s[54:55], s[54:55], vcc")
        e("s_cbranch_scc1 K1_round")
    e("K1_allvalid:")
    for cp in range(15):
        e(f"s_cmp_le_u32 s{sC}, {cp}")
        e("s_cbranch_scc1 K1_nogather")
        cmad(vHr, vHi, vQ + 2, vQ + 3, vAcc + 2 * cp, vAcc + 2 * cp + 1, vt0, vt1)
    e("K1_nogather:")
    e(f"ds_write_b64 v{vAd}, v[{vHr}:{vHi}] offset:{HB}")
    e("s_waitcnt lgkmcnt(0)")
    e("K1_lbdone:")
    e("s_barrier")
    stamp(4)
    vX = 224; vD = 240; vXO = 223
    e(f"s_lshl_b32 s52, s{sC}, 7")
    e(f"s_lshl_b32 s53, s{sW}, 4")
    e("s_add_u32 s52, s52, s53")
    e(f"v_lshrrev_b32 v{vt0}, 4, v{vLane}")
    e(f"v_add_u32 v{vt0}, s52, v{vt0}")
    e(f"s_lshl_b32 s52, s{sG}, 6")
    e(f"v_and_b32 v{vt1}, 15, v{vLane}")
    e(f"v_lshl_add_u32 v{vt1}, v{vt1}, 2, s52")
    e(f"v_lshlrev_b32 v{vXO}, 2, v{vt1}")
    e(f"v_lshl_add_u32 v{vXO}, v{vt0}, 12, v{vXO}")
    e(f"v_lshlrev_b32 v{vt1}, 1, v{vt1}")
    e(f"global_load_dwordx2 v[{vD}:{vD+1}], v{vt1}, s[88:89]")
    e(f"v_lshl_add_u32 v{vt1}, v{vt0}, 11, v{vt1}")
    for i in range(4):
        e(f"global_load_dwordx2 v[{vX+2*i}:{vX+2*i+1}], v{vt1}, s[4:5]")
        if i < 3: e(f"v_add_u32 v{vt1}, 8192, v{vt1}")
    e(f"v_lshlrev_b32 v{vAd}, 3, v{vL31}")
    e(f"s_lshl_b32 s52, s{sWn}, 8")
    e(f"v_add_u32 v{vAd}, s52, v{vAd}")
    e(f"ds_read_b64 v[{vHr}:{vHi}], v{vAd} offset:{HB}")
    for s_ in range(6):
        e(f"ds_read_b64 v[{vES+2*s_}:{vES+2*s_+1}], v{vAd} offset:{EB+s_*512}")
        e(f"ds_read_b64 v[{vAcc+2*s_}:{vAcc+2*s_+1}], v{vAd} offset:{EB+4096+s_*512}")
    e(f"s_lshl_b32 s52, s{sT2}, 9")
    e(f"v_add_u32 v{vt0}, s52, v{vAd}")
    e(f"ds_read_b64 v[{vE2}:{vE2+1}], v{vt0} offset:{EB}")
    e(f"ds_read_b64 v[{vAcc+12}:{vAcc+13}], v{vt0} offset:{EB+4096}")
    e("s_waitcnt lgkmcnt(0)")
    for s_ in range(12):
        e(f"v_add_f32 v{vES+s_}, v{vES+s_}, v{vAcc+s_}")
    e(f"v_add_f32 v{vE2}, v{vE2}, v{vAcc+12}")
    e(f"v_add_f32 v{vE2+1}, v{vE2+1}, v{vAcc+13}")
    for s_ in range(6):
        e(f"s_cmp_le_u32 s{sT2}, {s_}")
        e("s_cbranch_scc1 K1_cdone")
        cmad(vHr, vHi, vP + 2, vP + 3, vES + 2 * s_, vES + 2 * s_ + 1, vt0, vt1)
    e("K1_cdone:")
    e("s_mov_b32 s54, 0")
    e("s_mov_b32 s55, -1")
    e("s_mov_b64 exec, s[54:55]")
    cmad(vHr, vHi, vP + 2, vP + 3, vE2, vE2 + 1, vt0, vt1)
    e("s_mov_b64 exec, -1")
    s2r, s2i = vP + 4, vP + 5
    for q in range(16):
        cmad(vHr, vHi, lr, li, vR + q, vR + 16 + q, vt0, vt1)
        e(f"v_mul_f32 v{vAcc+q}, v{s2r}, v{vHr}")
        e(f"v_fma_f32 v{vAcc+q}, -v{s2i}, v{vHi}, v{vAcc+q}")
        e(f"v_mul_f32 v{vAcc+16+q}, -v{s2r}, v{vHi}")
        e(f"v_fma_f32 v{vAcc+16+q}, -v{s2i}, v{vHr}, v{vAcc+16+q}")
    vPk = vAcc + 32
    for p in range(16):
        e(f"v_cvt_pk_bf16_f32 v{vPk+p}, v{vAcc+2*p}, v{vAcc+2*p+1}")
    e(f"s_lshl_b32 s52, s{sW}, 12")
    e(f"s_add_u32 s52, s52, {TB}")
    e(f"v_lshlrev_b32 v{vAd}, 6, v{vL31}")
    e(f"v_lshl_add_u32 v{vAd}, v{vHh}, 5, v{vAd}")
    e(f"v_add_u32 v{vAd}, s52, v{vAd}")
    e(f"ds_write_b128 v{vAd}, v[{vPk}:{vPk+3}]")
    e(f"ds_write_b128 v{vAd}, v[{vPk+4}:{vPk+7}] offset:16")
    e(f"ds_write_b128 v{vAd}, v[{vPk+8}:{vPk+11}] offset:2048")
    e(f"ds_write_b128 v{vAd}, v[{vPk+12}:{vPk+15}] offset:2064")
    e(f"v_lshrrev_b32 v{vt0}, 4, v{vLane}")
    e(f"v_lshrrev_b32 v{vt1}, 2, v{vLane}")
    e(f"v_and_b32 v{vt1}, 3, v{vt1}")
    e(f"v_lshl_add_u32 v{vt1}, v{vt0}, 3, v{vt1}")
    e(f"v_lshlrev_b32 v{vt1}, 6, v{vt1}")
    e(f"v_and_b32 v{vAd}, 3, v{vLane}")
    e(f"v_lshl_add_u32 v{vt1}, v{vAd}, 3, v{vt1}")
    e(f"v_add_u32 v{vt1}, s52, v{vt1}")
    e(f"v_and_b32 v{vAd}, 15, v{vLane}")
    e(f"s_lshl_b32 s52, s{sC}, 7")
    e(f"s_lshl_b32 s53, s{sT2}, 4")
    e("s_add_u32 s52, s52, s53")
    e(f"v_add_u32 v{vAd}, s52, v{vAd}")
    e(f"v_lshlrev_b32 v{vAd}, 12, v{vAd}")
    e(f"v_lshl_add_u32 v{vAd}, v{vt0}, 4, v{vAd}")
    e(f"s_lshl_b32 s52, s{sG}, 7")
    e(f"s_lshl_b32 s53, s{sWn}, 6")
    e("s_add_u32 s52, s52, s53")
    e(f"v_add_u32 v{vAd}, s52, v{vAd}")
    e(f"v_add_u32 v{vt0}, {16*4096}, v{vAd}")
    e("s_waitcnt lgkmcnt(0)")
    vO = vR
    for part in range(2):
        for th in range(2):
            b = vO + (part * 2 + th) * 4
            for u in range(2):
                e(f"ds_read_b64_tr_b16 v[{b+2*u}:{b+2*u+1}], v{vt1} offset:{part*2048 + u*256 + th*32}")
    e("s_waitcnt lgkmcnt(0)")
    for part in range(2):
        for th in range(2):
            b = vO + (part * 2 + th) * 4
            e(f"buffer_store_dwordx4 v[{b}:{b+3}], v{vAd if th == 0 else vt0}, s[{SH}:{SH+3}], 0 offen offset:{part*2048} sc1")
    stamp(5)
    NS = 6; SLOT = 24576; NST = 32; PF = NS - 1
    sWt, sKC = 44, 45
    SC, SO = 20, 24
    vFlg = vt0
    e(f"v_mov_b32 v{vt0}, s{sHF}")
    e(f"v_mov_b32 v{vt1}, 1")
    vDA = 4; vDB = 5
    vS = 232; vT = 52
    vFA = 64; vFB = 76
    vAcc = 96; vR = 128; vOA = 144
    t0, t1, t2 = vT, vT + 1, vT + 2
    e(f"s_and_b32 s{sWt}, s{sW}, 3")
    e(f"v_lshrrev_b32 v{t0}, 3, v{vLane}")
    e(f"v_and_b32 v{t0}, 3, v{t0}")
    e(f"v_lshl_add_u32 v{t0}, v{vHh}, 4, v{t0}")
    e(f"v_lshrrev_b32 v{t1}, 4, v{vLane}")
    e(f"v_and_b32 v{t2}, 7, v{vLane}")
    e(f"v_xor_b32 v{t1}, v{t1}, v{t2}")
    e(f"s_lshl_b32 s52, s{sKh}, 5")
    e(f"s_lshl_b32 s53, s{sWt}, 2")
    e("s_add_u32 s52, s52, s53")
    e(f"s_lshl_b32 s53, s{sG}, 6")
    e("s_add_u32 s52, s52, s53")
    e(f"v_add_u32 v{vDA}, s52, v{t0}")
    e(f"v_lshlrev_b32 v{vDA}, 11, v{vDA}")
    e(f"s_and_b32 s53, s{sW}, 1")
    e("s_lshl_b32 s53, s53, 2")
    e(f"v_xor_b32 v{t2}, s53, v{t1}")
    e(f"v_lshl_add_u32 v{vDA}, v{t2}, 4, v{vDA}")
    for i in range(2):
        e(f"s_lshl_b32 s52, s{sC}, 7")
        e(f"s_lshl_b32 s53, s{sW}, 4")
        e("s_add_u32 s52, s52, s53")
        e(f"s_add_u32 s52, s52, {8*i}")
        e(f"v_lshrrev_b32 v{vDB+i}, 3, v{vLane}")
        e(f"v_add_u32 v{vDB+i}, s52, v{vDB+i}")
        e(f"v_lshlrev_b32 v{vDB+i}, 12, v{vDB+i}")
        e(f"v_xor_b32 v{t2}, {4*i}, v{t1}")
        e(f"v_lshl_add_u32 v{vDB+i}, v{t2}, 4, v{vDB+i}")
    e(f"s_lshl_b32 s{sM0A}, s{sW}, 10")
    e(f"s_lshl_b32 s{sM0B}, s{sW}, 11")
    e(f"s_add_u32 s{sM0B}, s{sM0B}, 8192")
    srd(SC, 84, 1024 * 1024 * 2)
    srd(SO, 90, 2048 * 1024 * 4)
    def setk2(j):
        e(f"s_add_u32 s{sKC}, s{sG}, {j>>1}")
        e(f"s_and_b32 s{sKC}, s{sKC}, 15")
        e(f"s_lshl_b32 s{sKC}, s{sKC}, 7")
        e(f"s_add_u32 s{sK}, s{sKC}, {(j&1)*2048}")
        e(f"s_mov_b32 s{SC}, s{84 + 2*(j&1)}")
        e(f"s_and_b32 s{SC+1}, s{85 + 2*(j&1)}, 0xffff")
    def dma2(i3, slot_imm=None):
        base = sM0A if i3 == 0 else sM0B
        off = 0 if i3 == 0 else (i3 - 1) * 1024
        if slot_imm is not None:
            e(f"s_add_u32 m0, s{base}, {slot_imm*SLOT + off}")
        else:
            e(f"s_add_u32 s61, s{base}, s{sWr}")
            e(f"s_add_u32 m0, s61, {off}")
        e("s_nop 0")
        if i3 == 0:
            e(f"buffer_load_dwordx4 v{vDA}, s[{SC}:{SC+3}], s{sKC} offen lds")
        else:
            e(f"buffer_load_dwordx4 v{vDB+i3-1}, s[{SH}:{SH+3}], s{sK} offen" + os.environ.get("HLD", " sc1") + " lds")
    e(f"v_lshrrev_b32 v{t0}, 1, v{vL31}")
    e(f"v_and_b32 v{t0}, 7, v{t0}")
    e(f"v_xor_b32 v{t0}, v{t0}, v{vHh}")
    e(f"s_lshl_b32 s52, s{sKh}, 2")
    for ks in range(2):
        e(f"s_add_u32 s53, s52, {2*ks}")
        e(f"v_xor_b32 v{t1}, s53, v{t0}")
        e(f"v_lshlrev_b32 v{t1}, 4, v{t1}")
        e(f"v_lshl_add_u32 v{vRA+ks}, v{vL31}, 7, v{t1}")
        e(f"s_lshl_b32 s53, s{sWt}, 12")
        e("s_add_u32 s53, s53, 8192")
        e(f"v_add_u32 v{vRB+ks}, s53, v{vRA+ks}")
    for i in range(32):
        e(f"v_mov_b32 v{vAcc+i}, 0")
    e(f"v_mov_b32 v{vOA}, v{vXO}")
    e("s_waitcnt vmcnt(4)")
    for p in range(2):
        e(f"v_lshlrev_b32 v{t2+2*p}, 16, v{vD+p}")
        e(f"v_and_b32 v{t2+2*p+1}, 0xffff0000, v{vD+p}")
    for p in range(8):
        e(f"v_lshlrev_b32 v{t0}, 16, v{vX+p}")
        e(f"v_and_b32 v{t1}, 0xffff0000, v{vX+p}")
        e(f"v_mul_f32 v{t0}, v{t0}, v{t2+2*(p&1)}")
        e(f"v_mul_f32 v{t1}, v{t1}, v{t2+2*(p&1)+1}")
        e(f"v_cvt_pk_bf16_f32 v{t0}, v{t0}, v{t1}")
        e(f"v_lshlrev_b32 v{vS+2*p}, 16, v{t0}")
        e(f"v_and_b32 v{vS+2*p+1}, 0xffff0000, v{t0}")
    e("s_waitcnt vmcnt(0)")
    e("s_mov_b64 exec, 1")
    e(f"buffer_store_dword v{vt1}, v{vt0}, s[{SH}:{SH+3}], 0 offen sc1")
    e("s_mov_b64 exec, -1")
    stamp(10)
    e("s_barrier")
    stamp(11)
    if os.environ.get("POLLFIRST", "0") == "1":
        e(f"s_cmp_lg_u32 s{sW}, 0")
        e("s_cbranch_scc1 K2_pf")
        e(f"v_lshlrev_b32 v{vT+4}, 3, v{vLane}")
        e(f"s_lshl_b32 s52, s{sC}, 9")
        e(f"s_add_u32 s52, s52, {HFL}")
        e(f"v_add_u32 v{vT+5}, s52, v{vT+4}")
        e(f"buffer_load_dwordx2 v[{vT+6}:{vT+7}], v{vT+5}, s[{SH}:{SH+3}], 0 offen sc1")
        e("K2_pf:")
    for st in range(2):
        setk2(st)
        dma2(0, st); dma2(1, st); dma2(2, st)
    for st in range(2, PF):
        setk2(st)
        dma2(0, st)
    stamp(12)
    e(f"s_cmp_lg_u32 s{sW}, 0")
    e("s_cbranch_scc1 K2_polldone")
    e(f"v_lshlrev_b32 v{vT+4}, 3, v{vLane}")
    e(f"s_lshl_b32 s52, s{sC}, 9")
    e(f"s_add_u32 s52, s52, {HFL}")
    e(f"v_add_u32 v{vT+5}, s52, v{vT+4}")
    e("s_mov_b32 s56, 0")
    e("K2_poll:")
    e(f"buffer_load_dwordx2 v[{vT+6}:{vT+7}], v{vT+5}, s[{SH}:{SH+3}], 0 offen sc1")
    e("s_add_u32 s56, s56, 1")
    e("s_waitcnt vmcnt(0)")
    e(f"v_cmp_ne_u32 vcc, 1, v{vT+6}")
    e(f"v_cmp_ne_u32 s[54:55], 1, v{vT+7}")
    e("s_or_b64 s[54:55], s[54:55], vcc")
    e("s_cbranch_scc0 K2_polldone")
    e("s_cmp_lt_u32 s56, 0x200000")
    e("s_cbranch_scc1 K2_poll")
    e("K2_polldone:")
    e("s_barrier")
    stamp(6)
    for st in range(2, PF):
        setk2(st)
        dma2(1, st); dma2(2, st)
    def rd2(va, vb, fb):
        r = []
        for mt in range(2):
            r.append(f"ds_read_b128 v[{fb+mt*4}:{fb+mt*4+3}], v{va} offset:{mt*4096}")
        r.append(f"ds_read_b128 v[{fb+8}:{fb+11}], v{vb}")
        return r
    def mf2(fb):
        r = []
        for mt in range(2):
            a = vAcc + mt * 16
            r.append(f"v_mfma_f32_32x32x16_bf16 v[{a}:{a+15}], v[{fb+mt*4}:{fb+mt*4+3}], v[{fb+8}:{fb+11}], v[{a}:{a+15}]")
        return r
    e(f"s_waitcnt vmcnt({2*(PF-2)})")
    e("s_barrier")
    stamp(7)
    for s_ in rd2(vRA, vRB, vFA): e(s_)
    e(f"s_mov_b32 s{sI}, 0")
    e(f"s_mov_b32 s{sRd}, 0")
    e(f"s_mov_b32 s{sRdN}, {SLOT}")
    e(f"s_mov_b32 s{sWr}, {PF*SLOT}")
    def book2(nxt_pf):
        e(f"s_mov_b32 s{sWr}, s{sRd}")
        e(f"s_mov_b32 s{sRd}, s{sRdN}")
        e(f"s_add_u32 s{sRdN}, s{sRdN}, {SLOT}")
        e(f"s_cmp_ge_u32 s{sRdN}, {NS*SLOT}")
        e(f"s_cselect_b32 s{sRdN}, 0, s{sRdN}")
        e(f"s_add_u32 s{sI}, s{sI}, 1")
        e(f"v_add_u32 v{vA1}, s{sRd}, v{vRA+1}")
        e(f"v_add_u32 v{vB1}, s{sRd}, v{vRB+1}")
        e(f"v_add_u32 v{vA0}, s{sRdN}, v{vRA}")
        e(f"v_add_u32 v{vB0}, s{sRdN}, v{vRB}")
        if nxt_pf:
            e(f"s_add_u32 s52, s{sI}, {PF}")
            e("s_lshr_b32 s53, s52, 1")
            e(f"s_add_u32 s{sKC}, s{sG}, s53")
            e(f"s_and_b32 s{sKC}, s{sKC}, 15")
            e(f"s_lshl_b32 s{sKC}, s{sKC}, 7")
            e("s_and_b32 s52, s52, 1")
            e("s_lshl_b32 s53, s52, 11")
            e(f"s_add_u32 s{sK}, s{sKC}, s53")
            e("s_cmp_eq_u32 s52, 0")
            e(f"s_cselect_b32 s{SC}, s84, s86")
            e(f"s_cselect_b32 s53, s85, s87")
            e(f"s_and_b32 s{SC+1}, s53, 0xffff")
    def body2(with_dma, wait):
        rB = rd2(vA1, vB1, vFB); mA = mf2(vFA)
        e(mA[0])
        for s_ in rB: e(s_)
        if with_dma: dma2(0)
        e(mA[1])
        for s_ in rd2(vA0, vB0, vFA): e(s_)
        if with_dma: dma2(1)
        e("s_waitcnt lgkmcnt(3)")
        mB = mf2(vFB)
        e(mB[0])
        if with_dma: dma2(2)
        book2(with_dma)
        e(mB[1])
        e(wait)
    e(f"v_add_u32 v{vA1}, s{sRd}, v{vRA+1}")
    e(f"v_add_u32 v{vB1}, s{sRd}, v{vRB+1}")
    e(f"v_add_u32 v{vA0}, s{sRdN}, v{vRA}")
    e(f"v_add_u32 v{vB0}, s{sRdN}, v{vRB}")
    setk2(PF)
    e("s_waitcnt lgkmcnt(0)")
    body2(True, "s_waitcnt vmcnt(7) lgkmcnt(0)")
    e("s_barrier")
    body2(True, "s_waitcnt vmcnt(8) lgkmcnt(0)")
    e("s_barrier")
    if os.environ.get("UNROLL", "0") == "1":
        for _ in range(NST - PF - 2):
            body2(True, f"s_waitcnt vmcnt({3*(PF-2)}) lgkmcnt(0)")
            e("s_barrier")
    else:
        e("K2_loop:")
        body2(True, f"s_waitcnt vmcnt({3*(PF-2)}) lgkmcnt(0)")
        e(f"s_cmp_lt_u32 s{sI}, {NST-PF}")
        e("s_barrier")
        e("s_cbranch_scc1 K2_loop")
    for j in range(PF):
        n = 3 * (PF - 3 - j)
        body2(False, f"s_waitcnt vmcnt({n}) lgkmcnt(0)" if n >= 0 else "s_waitcnt lgkmcnt(0)")
        e("s_barrier")
    stamp(8)
    vXW, vXR = vT, vT + 1
    RS = 272; PB = 128 * RS
    e(f"s_lshl_b32 s52, s{sWt}, 5")
    e(f"v_add_u32 v{vXW}, s52, v{vL31}")
    e(f"v_mul_u32_u24 v{vXW}, {RS}, v{vXW}")
    e(f"v_lshl_add_u32 v{vXW}, v{vHh}, 6, v{vXW}")
    e(f"s_mul_i32 s52, s{sKh}, {PB}")
    e(f"v_add_u32 v{vXW}, s52, v{vXW}")
    e(f"v_lshrrev_b32 v{vXR}, 4, v{vLane}")
    e(f"s_lshl_b32 s52, s{sW}, 4")
    e(f"v_add_u32 v{vXR}, s52, v{vXR}")
    e(f"v_mul_u32_u24 v{vXR}, {RS}, v{vXR}")
    e(f"v_and_b32 v{vT+2}, 15, v{vLane}")
    e(f"v_lshl_add_u32 v{vXR}, v{vT+2}, 4, v{vXR}")
    e("s_nop 4")
    for mt in range(2):
        for i in range(4):
            e(f"ds_write_b128 v{vXW}, v[{vAcc+mt*16+i*4}:{vAcc+mt*16+i*4+3}] offset:{mt*128+i*16}")
    e("s_waitcnt lgkmcnt(0)")
    e("s_barrier")
    for i in range(4):
        e(f"ds_read_b128 v[{vR+i*4}:{vR+i*4+3}], v{vXR} offset:{i*4*RS}")
        e(f"ds_read_b128 v[{vFA+i*4}:{vFA+i*4+3}], v{vXR} offset:{PB+i*4*RS}")
    for i in range(4):
        e(f"s_waitcnt lgkmcnt({6-2*i})")
        for k in range(4):
            e(f"v_add_f32 v{vR+i*4+k}, v{vR+i*4+k}, v{vFA+i*4+k}")
            e(f"v_add_f32 v{vR+i*4+k}, v{vR+i*4+k}, v{vS+i*4+k}")
        e(f"buffer_store_dwordx4 v[{vR+i*4}:{vR+i*4+3}], v{vOA}, s[{SO}:{SO+3}], 0 offen")
        if i < 3: e(f"v_add_u32 v{vOA}, 16384, v{vOA}")
    stamp(9)
    if STAMP:
        e(f"s_cmp_lg_u32 s{sW}, 0")
        e(f"s_cbranch_scc1 KF_done")
        e("s_mov_b64 exec, 1")
        e(f"s_lshl_b32 s62, s2, 6")
        e(f"s_add_u32 s62, s62, {STB}")
        e(f"v_mov_b32 v{vT}, s62")
        e(f"v_mov_b32 v{vT+2}, 128")
        for i in range(13):
            e(f"v_mov_b32 v{vT+1}, s{70+i}")
            e(f"buffer_store_dword v{vT+1}, v{vT}, s[{SH}:{SH+3}], 0 offen offset:{4*i}")
            e("s_cmp_lg_u32 s2, 100")
            e(f"s_cbranch_scc1 SK{i}")
            e(f"buffer_store_dword v{vT+1}, v{vT+2}, s[{SD}:{SD+3}], 0 offen offset:{4*i}")
            e(f"SK{i}:")
    e("KF_done:")
    e("s_endpgm")

gen()
out = HDR + "\n".join(L) + f"""
.section .rodata,"a"
.p2align 6
.amdhsa_kernel {KN}
  .amdhsa_next_free_vgpr 256
  .amdhsa_next_free_sgpr 96
  .amdhsa_accum_offset 256
  .amdhsa_group_segment_fixed_size 0
  .amdhsa_kernarg_size 96
  .amdhsa_user_sgpr_count 2
  .amdhsa_user_sgpr_kernarg_segment_ptr 1
  .amdhsa_system_sgpr_workgroup_id_x 1
  .amdhsa_float_denorm_mode_32 3
.end_amdhsa_kernel
"""
path = sys.argv[1] if len(sys.argv) > 1 else "standalone__ssm_conv_s5__prompt.s"
open(path, "w").write(out)
print("wrote", path, len(out), "bytes")
```
